```python
import torch

def _softmax(x, axis=-1):
    return torch.softmax(x, dim=axis)
def _gelu(x):
    return torch.nn.functional.gelu(x, approximate="tanh")
def _silu(x):
    return torch.nn.functional.silu(x)
def _sigmoid(x):
    return torch.sigmoid(x)
def _layernorm(x, axis=-1, eps=1e-5):
    m = x.mean(dim=axis, keepdim=True)
    v = x.var(dim=axis, keepdim=True, unbiased=False)
    return (x - m) / torch.sqrt(v + eps)
def _scatter_add(tgt, idx, src, axis=0):
    return tgt.clone().index_add_(axis, idx, src)
def _segment_sum(src, seg, n):
    out = torch.zeros((n,) + src.shape[1:], dtype=src.dtype)
    return out.index_add_(0, seg, src)
def _pad(x, pw):
    flat = tuple(v for pair in reversed(pw) for v in pair)
    return torch.nn.functional.pad(x, flat)

kernel_name = 'gated_mix__sliding_block__sliding_block__prompt'

def setup_inputs():

    _w = (lambda a: (lambda t: t.to(torch.bfloat16) if t.is_floating_point() else t)(torch.as_tensor(a)))
    def _A_setup():
        B, S, D = 1, 2048, 576
        return {
            "x": _w((lambda *s: torch.randn(*s, dtype=torch.bfloat16) * 0.05)(B, S, D)),
            "wqkv": _w((lambda *s: torch.randn(*s, dtype=torch.bfloat16) * 0.8)(D, 3 * D)),
            "wo": _w((lambda *s: torch.randn(*s, dtype=torch.bfloat16) * 0.05)(D, D)),
        }
    _A_in = _A_setup()

    def _B_setup():
        B, S, D = 1, 2048, 576
        return {
            "x": _w((lambda *s: torch.randn(*s, dtype=torch.bfloat16) * 0.05)(B, S, D)),
            "wqkv": _w((lambda *s: torch.randn(*s, dtype=torch.bfloat16) * 0.8)(D, 3 * D)),
            "wo": _w((lambda *s: torch.randn(*s, dtype=torch.bfloat16) * 0.05)(D, D)),
        }
    _B_in = _B_setup()

    return {
        "A_x": _A_in["x"],
        "A_wqkv": _A_in["wqkv"],
        "A_wo": _A_in["wo"],
        "B_x": _B_in["x"],
        "B_wqkv": _B_in["wqkv"],
        "B_wo": _B_in["wo"],
        "gate_w": _w((lambda *s: torch.randn(*s, dtype=torch.bfloat16) * 0.05)(576) * 16.0),
    }

def reference(A_x, A_wqkv, A_wo, B_x, B_wqkv, B_wo, gate_w):
    def _A_ref(x, wqkv, wo):
        B, S, D = x.shape
        H = 32; Dh = D // H; W = 256
        qkv = (lambda x, *d: x.permute(*d))((x @ wqkv).reshape(B, S, 3, H, Dh), 2, 0, 3, 1, 4)
        q, k, v = qkv[0], qkv[1], qkv[2]
        scores = torch.einsum("bhqd,bhkd->bhqk", q, k) * (Dh ** -0.5)
        idx = torch.arange(S)
        mask = (idx[:, None] - idx[None, :] >= 0) & (idx[:, None] - idx[None, :] < W)
        scores = torch.where(mask[None, None], scores, -1e9)
        p = _softmax(scores, axis=-1)
        o = torch.einsum("bhqk,bhkd->bhqd", p, v)
        return (lambda x, *d: x.permute(*d))(o, 0, 2, 1, 3).reshape(B, S, D) @ wo

    def _B_ref(x, wqkv, wo):
        B, S, D = x.shape
        H = 32; Dh = D // H; W = 256
        qkv = (lambda x, *d: x.permute(*d))((x @ wqkv).reshape(B, S, 3, H, Dh), 2, 0, 3, 1, 4)
        q, k, v = qkv[0], qkv[1], qkv[2]
        scores = torch.einsum("bhqd,bhkd->bhqk", q, k) * (Dh ** -0.5)
        idx = torch.arange(S)
        mask = (idx[:, None] - idx[None, :] >= 0) & (idx[:, None] - idx[None, :] < W)
        scores = torch.where(mask[None, None], scores, -1e9)
        p = _softmax(scores, axis=-1)
        o = torch.einsum("bhqk,bhkd->bhqd", p, v)
        return (lambda x, *d: x.permute(*d))(o, 0, 2, 1, 3).reshape(B, S, D) @ wo

    x = A_x
    g = _sigmoid((x * gate_w).sum(-1, keepdims=True))
    a = _A_ref(x, A_wqkv, A_wo)
    b = _B_ref(x, B_wqkv, B_wo)
    return g * a + (1 - g) * b
```

```python
import re

class Asm:
    def __init__(self):
        self.lines = []
        self.lds = []
        self.vm = []
    def __call__(self, s):
        for ln in s.strip("\n").split("\n"):
            ln = ln.strip()
            if ln: self.lines.append("    " + ln if not ln.endswith(":") else ln)
    def label(self, n): self.lines.append(n + ":")
    def comment(self, s): self.lines.append("    ; " + s)
    def ds(self, s, tag=None):
        self(s); self.lds.append(tag)
    def vmem(self, s, tag=None):
        self(s); self.vm.append(tag)
    def need_lds(self, *tags):
        idx = -1
        for i, t in enumerate(self.lds):
            if t in tags: idx = i
        if idx < 0: return
        n = len(self.lds) - 1 - idx
        n = min(n, 15)
        self(f"s_waitcnt lgkmcnt({n})")
        self.lds = self.lds[len(self.lds) - n:] if n else []
    def need_vm(self, *tags):
        idx = -1
        for i, t in enumerate(self.vm):
            if t in tags: idx = i
        if idx < 0: return
        n = len(self.vm) - 1 - idx
        n = min(n, 63)
        self(f"s_waitcnt vmcnt({n})")
        self.vm = self.vm[len(self.vm) - n:] if n else []
    def wait_all(self, vm=True, lds=True):
        p = []
        if vm: p.append("vmcnt(0)"); self.vm = []
        if lds: p.append("lgkmcnt(0)"); self.lds = []
        self("s_waitcnt " + " ".join(p))
    def text(self): return "\n".join(self.lines) + "\n"

def vr(a, n=1): return f"v{a}" if n == 1 else f"v[{a}:{a+n-1}]"
def sr(a, n=1): return f"s{a}" if n == 1 else f"s[{a}:{a+n-1}]"

def _regs(op):
    op = op.strip()
    op = re.sub(r"^-", "", op); op = re.sub(r"^\|(.*)\|$", r"\1", op); op = re.sub(r"^abs\((.*)\)$", r"\1", op)
    m = re.fullmatch(r"([vsa])(\d+)", op)
    if m: return {(m.group(1), int(m.group(2)))}
    m = re.fullmatch(r"([vsa])\[(\d+):(\d+)\]", op)
    if m: return {(m.group(1), i) for i in range(int(m.group(2)), int(m.group(3)) + 1)}
    if op in ("vcc", "vcc_lo", "vcc_hi"): return {("x", "vcc")}
    if op in ("exec", "exec_lo", "exec_hi"): return {("x", "exec")}
    if op == "m0": return {("x", "m0")}
    return set()

TRANS = ("v_exp_f32", "v_log_f32", "v_rcp_f32", "v_rsq_f32", "v_sqrt_f32", "v_sin_f32", "v_cos_f32")
def parse(line):
    line = line.split(";")[0].strip()
    if not line or line.endswith(":") or line.startswith("."): return None
    parts = line.split(None, 1)
    mn = parts[0]
    ops = []
    if len(parts) > 1:
        rest = parts[1]
        toks = [t.strip() for t in rest.split(",")]
        for t in toks:
            ops.append(t.split()[0] if t else t)
    d = dict(mn=mn, ops=ops, raw=line)
    R = [_regs(o) for o in ops]
    w, r = set(), set()
    if mn.startswith("v_mfma"):
        w = R[0]; d["A"] = R[1]; d["B"] = R[2]; d["C"] = R[3]; r = R[1] | R[2] | R[3]; d["cls"] = "mfma"
        d["passes"] = 8 if "32x32" in mn else 4
    elif mn.startswith("v_cmp"):
        w = R[0]; r = set().union(*R[1:]); d["cls"] = "valu"
        if mn.startswith("v_cmpx"): w = w | {("x", "exec")}
    elif mn.startswith("v_permlane") and "swap" in mn:
        w = R[0] | R[1]; r = R[0] | R[1]; d["cls"] = "valu"
    elif mn.startswith("v_"):
        w = R[0]; r = set().union(*R[1:]) if len(R) > 1 else set(); d["cls"] = "valu"
        if mn.startswith(("v_add_co", "v_sub_co", "v_addc_co")): w = R[0] | R[1]; r = set().union(*R[2:])
        if mn.startswith(("v_fmac", "v_dot2c", "v_writelane")): r = r | R[0]
    elif mn.startswith("ds_read") or mn.startswith("ds_bpermute") or "_rtn" in mn:
        w = R[0]; r = set().union(*R[1:]); d["cls"] = "ds"
    elif mn.startswith("ds_"):
        r = set().union(*R); d["cls"] = "ds"
    elif mn.startswith(("buffer_load", "global_load")):
        d["cls"] = "vmem"
        if " lds" in line or "_lds_" in mn: r = set().union(*R) | {("x", "m0")}; d["dma"] = True
        else: w = R[0]; r = set().union(*R[1:])
    elif mn.startswith(("buffer_store", "global_store", "buffer_atomic", "global_atomic")):
        d["cls"] = "vmem"; r = set().union(*R); d["store"] = True
        d["wide"] = "x4" in mn or "x3" in mn
        d["data"] = R[0] if mn.startswith("buffer") else R[1]
        if "atomic" in mn and "sc0" in line: w = R[0]
    elif mn.startswith(("buffer_", "global_")):
        d["cls"] = "vmem"
    elif mn.startswith("s_"):
        d["cls"] = "salu"
        if mn.startswith(("s_cmp", "s_waitcnt", "s_barrier", "s_nop", "s_branch", "s_cbranch", "s_endpgm", "s_setprio", "s_sleep", "s_bitcmp")):
            r = set().union(*R) if R else set()
        else:
            w = R[0] if R else set(); r = set().union(*R[1:]) if len(R) > 1 else set()
            if "saveexec" in mn: w = w | {("x", "exec")}
    else:
        d["cls"] = "other"
    d["w"], d["r"] = w, r
    d["states"] = 1
    if mn == "s_nop": d["states"] = int(ops[0], 0) + 1
    return d

def check_hazards(text, window=24):
    lines = text.split("\n")
    ins, labels = [], {}
    for ln in lines:
        s = ln.split(";")[0].strip()
        if s.endswith(":"): labels[s[:-1]] = len(ins); continue
        p = parse(ln)
        if p: ins.append(p)
    errs = []
    def succ(i):
        p = ins[i]
        if p["mn"] == "s_endpgm": return []
        if p["mn"] == "s_branch": return [labels[p["ops"][0]]]
        if p["mn"].startswith("s_cbranch"): return [i + 1, labels[p["ops"][0]]]
        return [i + 1]
    def need(a, b):
        n = 0
        ca, cb = a["cls"], b["cls"]
        vw = {x for x in a["w"] if x[0] in "va"}
        sw = {x for x in a["w"] if x[0] == "s" or x == ("x", "vcc")}
        if ca == "valu":
            if cb == "mfma" and vw & b["r"]: n = max(n, 2)
            if a["mn"].startswith(TRANS) and cb in ("valu",) and not b["mn"].startswith(TRANS) and vw & b["r"]: n = max(n, 1)
            if a["mn"].startswith(TRANS) and cb in ("ds", "vmem") and vw & b["r"]: n = max(n, 1)
            if b["mn"].startswith(("v_readfirstlane", "v_readlane")) and vw & b["r"]: n = max(n, 1)
            if b["mn"].startswith("v_permlane") and vw & b["r"]: n = max(n, 2)
            if "dpp" in b["raw"] or "row_" in b["raw"] or "quad_perm" in b["raw"]:
                if vw & b["r"]: n = max(n, 2)
            if sw and cb == "valu" and sw & b["r"]: n = max(n, 2)
            if sw and cb == "vmem" and sw & b["r"]: n = max(n, 5)
            if sw and b["mn"].startswith(("v_readlane", "v_writelane")) and sw & b["r"]: n = max(n, 4)
            if ("x", "exec") in a["w"]:
                if cb == "mfma" or b["mn"].startswith(("v_readlane", "v_readfirstlane", "v_writelane", "v_permlane")): n = max(n, 4)
        if ca == "salu" and ("x", "m0") in a["w"] and b.get("dma"): n = max(n, 1)
        if ca == "mfma":
            P = a["passes"]
            big = {4: 8, 8: 12}[P]
            if cb == "mfma":
                if vw & (b["A"] | b["B"]): n = max(n, big)
                if vw & b["C"]:
                    if not (b["C"] == a["w"] and b["passes"] == P): n = max(n, {4: 6, 8: 10}[P])
                elif vw & b["w"] and b["w"] != a["w"]: n = max(n, {4: 6, 8: 10}[P])
            elif cb in ("valu", "ds", "vmem"):
                if vw & (b["r"] | b["w"]): n = max(n, big)
            if cb == "valu" and a["C"] & b["w"]: n = max(n, {4: 3, 8: 7}[P])
        if ca == "vmem" and a.get("wide") and a.get("store"):
            if a["data"] & b["w"]: n = max(n, 2 if cb == "valu" else 1)
        return n
    for i, a in enumerate(ins):
        if a["cls"] not in ("valu", "mfma", "salu", "vmem"): continue
        stack = [(j, 0) for j in succ(i)]
        seen = set()
        while stack:
            j, dist = stack.pop()
            if j >= len(ins) or dist >= 13 or (j, dist) in seen: continue
            seen.add((j, dist))
            b = ins[j]
            n = need(a, b)
            if n > dist: errs.append(f"hazard: '{a['raw']}' -> '{b['raw']}' needs {n} has {dist}")
            for k in succ(j): stack.append((k, dist + b["states"]))
    return sorted(set(errs))
```

```python
import sys, math, struct
from asmdsl import *

NAME = "gated_mix__sliding_block__sliding_block__prompt"
S, D, H, DH = 2048, 576, 32, 18
XB = S * D * 2
WB = D * 3 * D * 2
WOB = D * D * 2
WSB = 268435456
KV_OFF = 0
KV_WG = 38912
KV_HEAD = 9728
Q_OFF = 0xA00000
Q_WG = 18944
O_OFF = 0x1000000
STG = 49152
GT_OFF = 3 * STG
LDS_PROJ = GT_OFF + 2048
HB = 29184
V_OFF = 12288
KE_OFF = 27648
VT = 1280
QA = 4 * HB
QE = QA + 16384
GF = QE + 2048
LDS_ATT = GF + 512
NEG = 0xF149F2CA
QSCALE = (DH ** -0.5) * math.log2(math.e)
def f2u(f): return struct.unpack("<I", struct.pack("<f", f))[0]

def wpos(seg, c):
    if seg == 0: return c
    if seg == 1: return 10 + c
    return {7: 31, 8: 28}.get(c, 21 + c)
GATE_POS = 9
def main_groups(h): return [0, 5, 9, 14][h]
def tile_groups(name):
    def gh(seg, g): return (wpos(seg, g >> 1), g & 1)
    if name.startswith("QK"):
        h = int(name[2]); g0 = main_groups(h)
        return [gh(0, g0 + i) for i in range(4)] + [gh(1, g0 + i) for i in range(4)]
    if name.startswith("V"):
        a, b = int(name[1]), int(name[2])
        return [gh(2, main_groups(a) + i) for i in range(4)] + [gh(2, main_groups(b) + i) for i in range(4)]
    if name == "EX":
        return [gh(0, 4), gh(0, 13), gh(1, 4), gh(1, 13), gh(2, 4), gh(2, 13), (GATE_POS, 0), (GATE_POS, 0)]
TILES = [["QK0", "QK1", "QK2", "QK3"], ["V03", "V12", "EX"]]

def srd(a, s, size):
    a(f"s_mov_b32 s{s+2}, {size}\ns_mov_b32 s{s+3}, 0x20000")

def wg_map(a, opt):
    if opt["map"] == "r16g2":
        a("""s_and_b32 s22, s2, 7
s_lshl_b32 s22, s22, 1
s_bfe_u32 s32, s2, 0x10003
s_add_u32 s22, s22, s32
s_lshr_b32 s21, s2, 4""")
    else:
        a("""s_and_b32 s22, s2, 3
s_lshl_b32 s22, s22, 2
s_bfe_u32 s32, s2, 0x20003
s_add_u32 s22, s22, s32
s_bfe_u32 s21, s2, 0x10002
s_lshl_b32 s21, s21, 3
s_lshr_b32 s32, s2, 5
s_add_u32 s21, s21, s32""")

def emit_masks(a):
    a("""v_and_b32 v2, 31, v1
v_lshrrev_b32 v3, 5, v1
v_lshlrev_b32 v3, 2, v3
v_sub_u32 v2, v2, v3""")
    a(f"s_mov_b32 s32, {NEG:#x}")
    for r in range(16):
        kr = (r & 3) + 8 * (r >> 2)
        a(f"v_subrev_u32 v3, {kr}, v2\nv_ashrrev_i32 v3, 31, v3\nv_and_b32 v{128+r}, s32, v3\nv_xor_b32 v{144+r}, s32, v{128+r}")

def proj_prologue(a, opt):
    a("""s_load_dwordx2 s[4:5], s[0:1], 0
s_load_dwordx2 s[8:9], s[0:1], 8
s_load_dwordx2 s[34:35], s[0:1], 32
s_load_dwordx2 s[16:17], s[0:1], 48
s_load_dwordx2 s[12:13], s[0:1], 72
v_and_b32 v1, 63, v0
v_lshrrev_b32 v2, 6, v0""")
    wg_map(a, opt)
    a("v_readfirstlane_b32 s20, v2")
    a("s_and_b32 s23, s22, 7")
    a("""v_and_b32 v3, 1, v2
v_lshrrev_b32 v4, 4, v1
v_lshl_or_b32 v4, v3, 2, v4
v_and_b32 v5, 7, v1
v_xor_b32 v4, v4, v5
v_lshrrev_b32 v5, 3, v1
v_mul_u32_u24 v5, 1152, v5
v_lshl_add_u32 v10, v4, 4, v5""")
    a("""v_lshrrev_b32 v4, 5, v1
v_lshl_add_u32 v5, v3, 1, v4
v_lshlrev_b32 v5, 2, v5
v_and_b32 v6, 31, v1
v_xor_b32 v6, v6, v5
v_mul_u32_u24 v4, 3456, v4
v_lshl_add_u32 v11, v6, 4, v4""")
    a("""v_mov_b32 v7, 992
v_cmp_le_u32 vcc, 10, v6
v_mov_b32 v8, 976
s_nop 0
v_cndmask_b32 v7, 0, v7, vcc
v_cmp_le_u32 vcc, 21, v6
v_add_u32 v11, v11, v7
s_nop 0
v_cndmask_b32 v8, 0, v8, vcc
v_cmp_eq_u32 vcc, 28, v6
v_add_u32 v11, v11, v8
s_nop 0
v_cndmask_b32_e64 v7, 0, 16, vcc
v_cmp_eq_u32 vcc, 31, v6
v_add_u32 v11, v11, v7
s_nop 0
v_cndmask_b32_e64 v7, 0, 48, vcc
v_sub_u32 v11, v11, v7""")
    valid = 0
    for seg in range(3):
        for c in range(9): valid |= 1 << wpos(seg, c)
    a(f"""s_mov_b32 s32, {valid:#x}
v_lshrrev_b32 v7, v6, s32
v_and_b32 v7, 1, v7
v_cmp_eq_u32 s[30:31], 1, v7""")
    a("""s_lshl_b32 s26, s21, 7
s_lshl_b32 s32, s20, 3
s_add_u32 s26, s26, s32
s_mul_i32 s26, s26, 1152
s_mul_i32 s27, s20, 6912
s_mul_i32 s32, s23, 144
s_add_u32 s27, s27, s32""")
    rot = opt["rot"]
    if rot == "none": a("s_mov_b32 s25, 0")
    elif rot == "R":  a("s_cmp_ge_u32 s21, 9\ns_cselect_b32 s32, 9, 0\ns_sub_u32 s25, s21, s32")
    elif rot == "RG":
        a("s_and_b32 s25, s21, 7\ns_and_b32 s32, s22, 3\ns_lshl_b32 s32, s32, 1\ns_add_u32 s25, s25, s32\ns_cmp_ge_u32 s25, 9\ns_cselect_b32 s32, 9, 0\ns_sub_u32 s25, s25, s32")
    a("s_lshl_b32 s29, s20, 10")
    a("s_waitcnt lgkmcnt(0)")
    a("s_cmp_ge_u32 s22, 8\ns_cselect_b32 s8, s34, s8\ns_cselect_b32 s9, s35, s9")
    srd(a, 4, XB); srd(a, 8, WB); srd(a, 12, WSB); srd(a, 16, D * 2)

def dma_setup(a):
    a("""s_lshl_b32 s36, s25, 7
s_add_u32 s36, s36, s26
s_mul_i32 s37, s25, 221184
s_add_u32 s37, s37, s27
s_add_u32 m0, s28, s29""")
def dma_advance(a):
    a(f"""s_add_u32 s25, s25, 1
s_cmp_eq_u32 s25, 9
s_cselect_b32 s25, 0, s25
s_add_u32 s28, s28, {STG}
s_cmp_eq_u32 s28, {3*STG}
s_cselect_b32 s28, 0, s28""")
def dma_piece(a, j):
    if j < 2:
        a.vmem("buffer_load_dwordx4 v10, s[4:7], s36 offen lds")
        a("s_add_u32 m0, m0, 0x2000")
        if j == 0: a(f"s_add_u32 s36, s36, {64*1152}")
    else:
        a("s_mov_b64 exec, s[30:31]")
        a.vmem("buffer_load_dwordx4 v11, s[8:11], s37 offen lds")
        a("s_mov_b64 exec, -1")
        if j < 5: a(f"s_add_u32 m0, m0, 0x2000\ns_add_u32 s37, s37, {16*3456}")

def proj_body(a, opt):
    XA, WA, XBf, WBf, ACC = 24, 28, 44, 48, 64
    a(f"""v_lshlrev_b32 v3, 4, v1
s_mov_b32 m0, {GT_OFF}
s_mov_b32 s28, 0""")
    a.vmem("buffer_load_dwordx4 v3, s[16:19], 0 offen lds", "gt")
    a.vmem("buffer_load_dwordx4 v3, s[16:19], 0 offen offset:1024 lds", "gt")
    a("s_mov_b32 s38, s25")
    for st in range(2):
        dma_setup(a)
        a("s_nop 0")
        for j in range(6): dma_piece(a, j)
        dma_advance(a)
        if st == 0: a("s_mov_b32 s39, s25")
    a("""s_and_b32 s32, s20, 3
s_lshl_b32 s32, s32, 12
v_and_b32 v3, 31, v1
v_lshrrev_b32 v4, 5, v1
v_bfe_u32 v5, v1, 1, 3
v_xor_b32 v5, v5, v4
v_lshlrev_b32 v5, 4, v5
v_lshl_add_u32 v5, v3, 7, v5
v_add_u32 v12, s32, v5
v_xor_b32 v13, 32, v12
v_xor_b32 v14, 64, v12
v_xor_b32 v15, 0x60, v12""")
    a("""v_bfe_u32 v5, v1, 2, 2
v_lshl_add_u32 v6, v4, 3, v5
v_lshlrev_b32 v6, 9, v6
v_lshlrev_b32 v5, 6, v5
v_and_b32 v7, 3, v1
v_lshlrev_b32 v7, 3, v7
v_and_b32 v8, 16, v1
v_cmp_ne_u32 s[40:41], 0, v8""")
    a(f"""v_lshlrev_b32 v20, 1, v1
v_add_u32 v20, {GT_OFF}, v20
v_and_b32 v21, 3, v1
v_lshlrev_b32 v21, 2, v21
v_xor_b32 v21, {GATE_POS}, v21
v_lshlrev_b32 v21, 4, v21
v_lshl_add_u32 v21, v1, 9, v21
v_add_u32 v21, 0x4000, v21""")
    for r in range(XBf, ACC + 64): a(f"v_mov_b32 v{r}, 0")
    if opt.get("masks_in_proj"): emit_masks_late = True
    a("s_cmp_ge_u32 s20, 4\ns_cbranch_scc1 L_proj_cg1")
    for cg in range(2):
        tiles = TILES[cg]
        nt = len(tiles)
        if cg == 1: a.label("L_proj_cg1")
        for ti, tn in enumerate(tiles):
            g = tile_groups(tn)
            lo = sum(((p * 2 + hf) << (8 * i)) for i, (p, hf) in enumerate(g[:4]))
            hi = sum(((p * 2 + hf) << (8 * i)) for i, (p, hf) in enumerate(g[4:]))
            a(f"""v_mov_b32 v8, {lo:#x}
v_mov_b32 v9, {hi:#x}
v_cndmask_b32_e64 v8, v8, v9, s[40:41]
v_bfe_u32 v8, v8, v7, 8
v_lshlrev_b32 v8, 3, v8
v_xor_b32 v8, v8, v5
v_add_u32 v{16+ti}, v8, v6""")
        if opt.get("fused"): emit_masks(a)
        if cg == 1:
            a("s_waitcnt vmcnt(12)")
            a("""s_lshl_b32 s32, s38, 7
s_lshl_b32 s33, s39, 7
v_add_u32 v8, s32, v20
v_add_u32 v9, s33, v20
ds_read_u16 v22, v8
ds_read_u16 v23, v9
s_waitcnt lgkmcnt(0)""")
            a(f"ds_write_b16 v21, v22\nds_write_b16 v21, v23 offset:{STG}")
        a("s_mov_b32 s24, 0\ns_mov_b32 s42, 0")
        a.label(f"L_proj_loop{cg}")
        a.lds = []
        a("s_waitcnt vmcnt(6) lgkmcnt(0)\ns_barrier")
        a(f"s_cmp_lt_u32 s24, 7\ns_cselect_b32 s6, {XB}, 0\ns_cselect_b32 s10, {WB}, 0")
        dma_setup(a)
        if cg == 1:
            a("s_lshl_b32 s32, s25, 7\nv_add_u32 v8, s32, v20\nv_add_u32 v9, s28, v21")
        def reads(ks, xb, wb):
            ops = [(f"ds_read_b128 {vr(xb,4)}, v{12+ks}", f"x{ks}")]
            for ti in range(nt):
                for hf in range(2):
                    ops.append((f"ds_read_b64_tr_b16 {vr(wb+4*ti+2*hf,2)}, v{16+ti} offset:{16384+ks*8192+hf*2048}", f"w{ks}_{ti}"))
            return ops
        dmaj = 0
        dma_at = opt["dma_at"][cg]
        for ks in range(4):
            rb = (XA, WA) if ks % 2 == 0 else (XBf, WBf)
            cb = (XBf, WBf) if ks % 2 == 0 else (XA, WA)
            rd = reads(ks, *rb)
            pk = (ks + 3) % 4
            per = [3, 4, 2, 0] if nt == 4 else [3, 4, 0]
            if ks == 0: per = [len(rd)] + [0] * (nt - 1)
            k = 0
            for ti in range(nt):
                if ks == 0 and ti == 0:
                    for o, t in rd: a.ds(o, t)
                    if cg == 1: a.ds("ds_read_u16 v22, v8", "g")
                if ks > 0: a.need_lds(f"x{pk}", f"w{pk}_{ti}")
                a(f"v_mfma_f32_32x32x16_bf16 {vr(ACC+16*ti,16)}, {vr(cb[1]+4*ti,4)}, {vr(cb[0],4)}, {vr(ACC+16*ti,16)}")
                if ks > 0:
                    for o, t in rd[k:k + per[ti]]: a.ds(o, t)
                    k += per[ti]
                while dmaj < 6 and dma_at[dmaj] == (ks, ti):
                    dma_piece(a, dmaj); dmaj += 1
                if cg == 1 and ks == 2 and ti == 0:
                    a.need_lds("g")
                    a.ds("ds_write_b16 v9, v22", "gw")
        assert dmaj == 6
        dma_advance(a)
        a(f"""s_add_u32 s42, s42, 1
s_cmp_eq_u32 s42, 3
s_cselect_b32 s42, 0, s42
s_mov_b32 s32, {STG}
s_cselect_b32 s32, {(-2*STG) & 0xffffffff:#x}, s32""")
        for r in list(range(12, 16)) + list(range(16, 16 + nt)): a(f"v_add_u32 v{r}, s32, v{r}")
        a(f"s_add_u32 s24, s24, 1\ns_cmp_lt_u32 s24, 9\ns_cbranch_scc1 L_proj_loop{cg}")
        a("s_waitcnt vmcnt(0) lgkmcnt(0)")
        a.lds = []; a.vm = []
        for ti in range(nt):
            a(f"v_mfma_f32_32x32x16_bf16 {vr(ACC+16*ti,16)}, {vr(WBf+4*ti,4)}, {vr(XBf,4)}, {vr(ACC+16*ti,16)}")
        a("s_barrier")
        a("s_and_b32 s32, s20, 3")
        if cg == 0:
            a(f"""v_lshlrev_b32 v2, 4, v1
s_lshl_b32 s33, s32, 10
s_add_u32 s34, s33, {QA}
s_add_u32 s33, s33, {8*1024}
v_add_u32 v3, s34, v2
v_add_u32 v2, s33, v2
v_add_u32 v4, {2*HB}, v2
s_mov_b32 s34, {f2u(QSCALE):#x}
s_nop 2""")
            for h in range(4):
                A = ACC + 16 * h
                t = 24 + 8 * (h & 1)
                for i in range(4): a(f"v_cvt_pk_bf16_f32 v{t+i}, v{A+8+2*i}, v{A+9+2*i}")
                a(f"ds_write_b128 v{2 if h < 2 else 4}, {vr(t,4)} offset:{(h&1)*HB}")
                for i in range(8): a(f"v_mul_f32 v{A+i}, s34, v{A+i}")
                for i in range(4): a(f"v_cvt_pk_bf16_f32 v{t+4+i}, v{A+2*i}, v{A+1+2*i}")
                a(f"ds_write_b128 v3, {vr(t+4,4)} offset:{h*4096}")
            a("s_branch L_proj_done")
        else:
            a(f"""v_bfe_u32 v2, v1, 2, 3
v_mul_u32_u24 v2, 160, v2
v_and_b32 v3, 3, v1
v_lshrrev_b32 v4, 5, v1
s_mul_i32 s33, s32, {VT}
s_add_u32 s33, s33, {V_OFF + 8*VT}
v_add_u32 v2, s33, v2
v_lshl_add_u32 v5, v3, 3, v2
v_lshl_add_u32 v2, v3, 5, v2
v_lshl_add_u32 v2, v4, 4, v2
v_add_u32 v6, {2*HB}, v2
v_mul_u32_u24 v7, {2*HB}, v4
v_add_u32 v5, v5, v7""")
            for idx, (ti, half, h) in enumerate([(0, 0, 0), (0, 1, 3), (1, 0, 1), (1, 1, 2)]):
                A = ACC + 16 * ti + 8 * half
                t = 24 + 4 * idx
                for i in range(4): a(f"v_cvt_pk_bf16_f32 v{t+i}, v{A+2*i}, v{A+1+2*i}")
                a(f"ds_write_b128 v{2 if h < 2 else 6}, {vr(t,4)} offset:{(h&1)*HB}")
            E = ACC + 32
            a(f"""v_and_b32 v3, 31, v1
v_lshlrev_b32 v3, 2, v3
s_lshl_b32 s33, s32, 7
s_add_u32 s34, s33, {KE_OFF + 8*128}
v_add3_u32 v8, v3, v7, s34
s_add_u32 s34, s33, {QE}
v_lshlrev_b32 v9, 10, v4
v_add3_u32 v9, v3, v9, s34
s_add_u32 s34, s33, {GF}
v_add_u32 v3, s34, v3
s_mov_b32 s34, {f2u(QSCALE):#x}
s_mov_b32 s35, {f2u(-math.log2(math.e)):#x}
s_cmp_ge_u32 s22, 8
s_cselect_b32 s35, {f2u(math.log2(math.e)):#x}, s35
v_mul_f32 v{E+12}, s35, v{E+12}
v_exp_f32 v{E+12}, v{E+12}""")
            for i in range(4): a(f"v_mul_f32 v{E+i}, s34, v{E+i}")
            a(f"""v_add_f32 v{E+12}, 1.0, v{E+12}
v_cvt_pk_bf16_f32 v40, v{E}, v{E+1}
v_cvt_pk_bf16_f32 v41, v{E+2}, v{E+3}
v_cvt_pk_bf16_f32 v42, v{E+4}, v{E+5}
v_cvt_pk_bf16_f32 v43, v{E+6}, v{E+7}
v_cvt_pk_bf16_f32 v44, v{E+8}, v{E+9}
v_mov_b32 v45, 0x3f80
v_cvt_pk_bf16_f32 v46, v{E+10}, v{E+11}
v_mov_b32 v47, 0x3f80
ds_write_b32 v9, v40
ds_write_b32 v9, v41 offset:512
ds_write_b32 v8, v42
ds_write_b32 v8, v43 offset:{HB}
ds_write_b64 v5, v[44:45] offset:128
ds_write_b64 v5, v[46:47] offset:{128+HB}
ds_write_b32 v3, v{E+12}""")
    a.label("L_proj_done")
    a("s_waitcnt lgkmcnt(0)\ns_barrier")

def kv_pieces(b):
    p = []
    for i in range(4): p.append((b * 4096 + i * 1024, i * 1024, False))
    for i in range(5): p.append((V_OFF + b * 5120 + i * 1024, 4096 + i * 1024, False))
    p.append((KE_OFF + b * 512, 9216, True))
    return p

def publish_kv(a, flags=""):
    a(f"""s_mul_i32 s32, s20, {HB}
v_lshlrev_b32 v3, 4, v1
v_add_u32 v2, s32, v3
s_lshl_b32 s33, s22, 4
s_add_u32 s33, s33, s21
s_mul_i32 s33, s33, {KV_WG}
s_mul_i32 s34, s20, {KV_HEAD}
s_add_u32 s33, s33, s34""")
    P = kv_pieces(2)
    for i, (lo, wo, half) in enumerate(P): a.ds(f"ds_read_b128 {vr(24+4*i,4)}, v2 offset:{lo}", f"p{i}")
    for i, (lo, wo, half) in enumerate(P):
        a.need_lds(f"p{i}")
        if wo % 4096 == 0 and wo: a(f"s_add_u32 s33, s33, 4096")
        if half: a("s_mov_b32 exec_hi, 0")
        a.vmem(f"buffer_store_dwordx4 {vr(24+4*i,4)}, v3, s[12:15], s33 offen offset:{wo % 4096} {flags}")
        if half: a("s_mov_b64 exec, -1")

def kernel_proj(opt):
    a = Asm()
    a("s_cmp_ge_u32 s2, 256\ns_cbranch_scc1 L_proj_exit")
    proj_prologue(a, opt)
    proj_body(a, opt)
    a("s_cmp_ge_u32 s20, 4\ns_cbranch_scc1 L_proj_pubq")
    publish_kv(a)
    a("s_branch L_proj_exit")
    a.label("L_proj_pubq")
    a(f"""s_sub_u32 s32, s20, 4
s_lshl_b32 s32, s32, 10
v_lshlrev_b32 v3, 4, v1
v_add_u32 v3, s32, v3
v_add_u32 v2, {QA}, v3
s_lshl_b32 s33, s22, 4
s_add_u32 s33, s33, s21
s_mul_i32 s33, s33, {Q_WG}
s_add_u32 s33, s33, {Q_OFF}""")
    for i in range(5):
        a(f"ds_read_b128 {vr(24+4*i,4)}, v2 offset:{4096*i}")
    a("s_waitcnt lgkmcnt(0)")
    for i in range(5):
        if i == 4: a(f"v_cmp_gt_u32 vcc, {Q_WG - 16384}, v3\ns_and_saveexec_b64 s[34:35], vcc\ns_cbranch_execz L_proj_exit")
        a(f"buffer_store_dwordx4 {vr(24+4*i,4)}, v3, s[12:15], s33 offen\ns_add_u32 s33, s33, 4096")
    a.label("L_proj_exit")
    return a

OA, OB, S0, S1, PP = 64, 80, 96, 112, 24
QAm, QAe, QBm, QBe = 32, 36, 40, 44
KB = [48, 54]
VLO, VHI = 160, 164
MD, MF = 128, 144
AKM, AKE, AV = 2, 3, 4

def halo_dma(a, b, srd_s, flags=""):
    for i, (lo, wo, half) in enumerate(kv_pieces(b)):
        a(f"s_add_u32 m0, s43, {lo}")
        if half: a("s_mov_b32 exec_hi, 0")
        else: a("s_nop 0")
        a.vmem(f"buffer_load_dwordx4 v5, {sr(srd_s,4)}, s44 offen {flags} lds")
        if half: a("s_mov_b64 exec, -1")
        else: a("s_add_u32 s44, s44, 1024")

def attn_setup(a):
    a(f"""s_and_b32 s45, s20, 3
s_lshr_b32 s46, s20, 2
s_lshl_b32 s46, s46, 1
s_mul_i32 s43, s45, {HB}
s_lshl_b32 s32, s46, 10
s_add_u32 s32, s32, s43
v_lshlrev_b32 v5, 4, v1
v_add_u32 v{AKM}, s32, v5
s_lshl_b32 s32, s46, 7
s_add_u32 s32, s32, s43
s_add_u32 s32, s32, {KE_OFF}
v_and_b32 v6, 31, v1
v_lshlrev_b32 v6, 2, v6
v_add_u32 v{AKE}, s32, v6
s_mul_i32 s32, s46, {VT}
s_add_u32 s32, s32, s43
s_add_u32 s32, s32, {V_OFF}
v_lshrrev_b32 v7, 5, v1
v_mul_u32_u24 v8, 160, v7
v_add_u32 v8, s32, v8
v_bfe_u32 v9, v1, 2, 2
v_and_b32 v10, 3, v1
v_lshlrev_b32 v10, 3, v10
v_lshl_add_u32 v10, v9, 5, v10
v_lshlrev_b32 v9, 3, v9
v_add_u32 v9, 0x80, v9
v_and_b32 v11, 16, v1
v_cmp_ne_u32 vcc, 0, v11
s_lshl_b32 s32, s45, 2
s_add_u32 s32, s32, s46
v_cndmask_b32 v10, v10, v9, vcc
v_add_u32 v{AV}, v8, v10
s_lshl_b32 s33, s32, 10
s_add_u32 s33, s33, {QA}
v_add_u32 v8, s33, v5
s_lshl_b32 s33, s32, 7
s_add_u32 s33, s33, {QE}
v_add_u32 v9, s33, v6
s_lshl_b32 s33, s46, 7
s_add_u32 s33, s33, {GF}
v_add_u32 v10, s33, v6""")
    a.ds(f"ds_read_b128 {vr(QAm,4)}, v8", "q")
    a.ds(f"ds_read_b128 {vr(QBm,4)}, v8 offset:1024", "q")
    a.ds(f"ds_read_b32 v{QAe}, v9", "q")
    a.ds(f"ds_read_b32 v{QBe}, v9 offset:128", "q")
    a.ds(f"ds_read_b32 v60, v10", "q")
    a.ds(f"ds_read_b32 v61, v10 offset:128", "q")
    for r in (QAe+1, QAe+2, QAe+3, QBe+1, QBe+2, QBe+3, KB[0]+1, KB[1]+1): a(f"v_mov_b32 v{r}, 0")
    a("v_subrev_u32 v7, 1, v7")

def attn_main(a, halo_wait=None):
    items = [("b", 9, MD), ("a", 8, MD), ("b", 8, None)]
    for j in range(7, 1, -1): items += [("a", j, None), ("b", j, None)]
    items += [("a", 1, None), ("b", 1, MF), ("a", 0, MF)]
    n = len(items)
    def ldK(j):
        kb = KB[j & 1]
        if halo_wait: halo_wait(a, j)
        a.ds(f"ds_read_b32 v{kb}, v{AKE} offset:{j*128}", f"k{j}")
        a.ds(f"ds_read_b128 {vr(kb+2,4)}, v{AKM} offset:{j*1024}", f"k{j}")
    def ldV(j, m):
        vb = VLO if m == 0 else VHI
        for hf in range(2):
            a.ds(f"ds_read_b64_tr_b16 {vr(vb+2*hf,2)}, v{AV} offset:{j*VT+(4*m+2*hf)*160}", f"v{j}_{m}")
    def qk(i, part):
        t, j, mask = items[i]
        Sx = S0 if i % 2 == 0 else S1
        kb = KB[j & 1]
        a.need_lds(f"k{j}")
        if part == 0:
            c = "0" if mask is None else vr(mask, 16)
            a(f"v_mfma_f32_32x32x16_bf16 {vr(Sx,16)}, {vr(kb,4)}, {vr(QAe if t=='a' else QBe,4)}, {c}")
        else:
            a(f"v_mfma_f32_32x32x16_bf16 {vr(Sx,16)}, {vr(kb+2,4)}, {vr(QAm if t=='a' else QBm,4)}, {vr(Sx,16)}")
    first = {"a": True, "b": True}
    def pv(i, m):
        t, j, mask = items[i]
        O = OA if t == "a" else OB
        a.need_lds(f"v{j}_{m}")
        c = "0" if first[t] else vr(O, 16)
        first[t] = False
        a(f"v_mfma_f32_32x32x16_bf16 {vr(O,16)}, {vr(VLO if m==0 else VHI,4)}, {vr(PP+4*m,4)}, {c}")
    def ex(i, g):
        Sx = S0 if i % 2 == 0 else S1
        for e in range(4): a(f"v_exp_f32 v{Sx+4*g+e}, v{Sx+4*g+e}")
        for c in range(2): a(f"v_cvt_pk_bf16_f32 v{PP+2*g+c}, v{Sx+4*g+2*c}, v{Sx+4*g+2*c+1}")
    ldK(9); ldK(8); ldV(9, 0); ldV(9, 1)
    a.need_lds("q")
    a(f"v_and_b32 v{QAe}, v{QAe}, v7\nv_and_b32 v{QBe}, v{QBe}, v7\ns_nop 1")
    qk(0, 0); qk(0, 1)
    a("s_nop 10")
    loadedK = {9, 8}
    for i in range(n):
        t, j, mask = items[i]
        nxt = i + 1 < n
        if nxt: qk(i + 1, 0)
        ex(i, 0)
        if nxt: qk(i + 1, 1)
        for k in (i + 2, i + 3):
            if k < n:
                jj = items[k][1]
                last_use = max(x for x in range(n) if items[x][1] == jj + 2) if any(items[x][1] == jj + 2 for x in range(n)) else -1
                if jj not in loadedK and last_use <= i + 1:
                    ldK(jj); loadedK.add(jj)
        ex(i, 1)
        if i > 0:
            pv(i - 1, 1)
            if items[i - 1][1] != j: ldV(j, 1)
        ex(i, 2)
        pv(i, 0)
        if nxt and items[i + 1][1] != j: ldV(items[i + 1][1], 0)
        ex(i, 3)
    a("s_nop 1")
    pv(n - 1, 1)

def attn_finish(a):
    a(f"""s_lshl_b32 s32, s21, 2
s_add_u32 s32, s32, s46
s_mul_i32 s32, s32, 72
s_lshr_b32 s34, s22, 1
s_add_u32 s34, s34, s32
s_add_u32 s34, s34, 64
s_lshl_b32 s34, s34, 10
s_and_b32 s35, s22, 1
s_lshl_b32 s35, s35, 9
s_add_u32 s34, s34, s35
s_lshl_b32 s35, s45, 2
s_add_u32 s34, s34, s35
s_add_u32 s34, s34, {O_OFF}
s_lshl_b32 s33, s22, 2
s_add_u32 s33, s33, s45
s_add_u32 s33, s33, s32
s_lshl_b32 s33, s33, 10
s_add_u32 s33, s33, {O_OFF}""")
    for t, O, g, extra in (("b", OB, 61, 72 * 1024), ("a", OA, 60, 0)):
        T = S0 if t == "b" else S1
        a(f"v_mul_f32 v{g}, v{g}, v{O+10}\nv_rcp_f32 v{g}, v{g}\ns_add_u32 s36, s33, {extra}\ns_add_u32 s37, s34, {extra}")
        for i in range(10): a(f"v_mul_f32 v{O+i}, v{O+i}, v{g}")
        for i in range(5): a(f"v_cvt_pk_bf16_f32 v{T+i}, v{O+2*i}, v{O+2*i+1}")
        a.vmem(f"buffer_store_dwordx4 {vr(T,4)}, v5, s[12:15], s36 offen")
        a("s_mov_b32 exec_hi, 0")
        a.vmem(f"buffer_store_dword v{T+4}, v5, s[12:15], s37 offen")
        a("s_mov_b64 exec, -1")

def kernel_attn(opt):
    a = Asm()
    a("s_cmp_ge_u32 s2, 256\ns_cbranch_scc1 L_attn_exit")
    a("""s_load_dwordx2 s[12:13], s[0:1], 72
v_and_b32 v1, 63, v0
v_lshrrev_b32 v2, 6, v0""")
    wg_map(a, opt)
    a("v_readfirstlane_b32 s20, v2\nv_lshlrev_b32 v5, 4, v1\ns_waitcnt lgkmcnt(0)")
    srd(a, 12, WSB)
    a("s_mov_b32 s48, s12\ns_mov_b32 s49, s13\ns_mov_b32 s51, 0x20000")
    a("s_cmp_ge_u32 s20, 4\ns_cbranch_scc1 L_attn_ldq")
    a(f"s_mul_i32 s43, s20, {HB}")
    for b in (2, 1, 0):
        a(f"""s_lshl_b32 s44, s22, 4
s_add_u32 s44, s44, s21
s_sub_u32 s44, s44, {2-b}
s_mul_i32 s44, s44, {KV_WG}
s_mul_i32 s32, s20, {KV_HEAD}
s_add_u32 s44, s44, s32
s_cmp_ge_u32 s21, {2-b}
s_cselect_b32 s50, {WSB}, 0
s_cselect_b32 s44, s44, 0""")
        halo_dma(a, b, 48)
    a("s_branch L_attn_ld_done")
    a.label("L_attn_ldq")
    a(f"""s_sub_u32 s32, s20, 4
s_lshl_b32 s32, s32, 10
s_lshl_b32 s33, s22, 4
s_add_u32 s33, s33, s21
s_mul_i32 s33, s33, {Q_WG}
s_add_u32 s33, s33, {Q_OFF}
s_add_u32 s33, s33, s32
s_add_u32 m0, s32, {QA}""")
    for i in range(5):
        a("s_nop 0\nbuffer_load_dwordx4 v5, s[12:15], s33 offen lds\ns_add_u32 s33, s33, 4096\ns_add_u32 m0, m0, 4096")
    a.label("L_attn_ld_done")
    emit_masks(a)
    a("s_waitcnt vmcnt(0)\ns_barrier")
    a.vm = []
    attn_setup(a)
    attn_main(a)
    attn_finish(a)
    a.label("L_attn_exit")
    return a

def kernel_outp(opt):
    a = Asm()
    NWG = 22 * 9
    a(f"s_cmp_ge_u32 s2, {NWG}\ns_cbranch_scc1 L_outp_exit")
    a("""s_load_dwordx2 s[4:5], s[0:1], 16
s_load_dwordx2 s[8:9], s[0:1], 40
s_load_dwordx2 s[16:17], s[0:1], 56
s_load_dwordx2 s[12:13], s[0:1], 72
v_and_b32 v1, 63, v0
v_lshrrev_b32 v2, 6, v0""")
    a("""s_mul_i32 s21, s2, 7282
s_lshr_b32 s21, s21, 16
s_mul_i32 s22, s21, 9
s_sub_u32 s22, s2, s22
v_readfirstlane_b32 s20, v2""")
    a("""v_lshrrev_b32 v3, 3, v1
v_bfe_u32 v4, v1, 4, 1
v_lshlrev_b32 v4, 2, v4
v_and_b32 v5, 7, v1
v_xor_b32 v4, v4, v5
v_lshlrev_b32 v4, 4, v4
v_mad_u32_u24 v10, v3, s99, v4""".replace("v_mad_u32_u24 v10, v3, s99, v4", "v_mul_u32_u24 v10, 1152, v3\nv_add_u32 v10, v10, v4"))
    a("""v_and_b32 v6, 3, v3
v_lshrrev_b32 v7, 2, v3
v_mul_u32_u24 v7, 36, v7
v_add_u32 v6, v6, v7
v_mul_u32_u24 v11, 1152, v6
v_add_u32 v11, v11, v4
v_lshlrev_b32 v12, 4, v1
s_waitcnt lgkmcnt(0)""")
    srd(a, 4, WOB); srd(a, 8, WOB); srd(a, 16, XB); srd(a, 12, O_OFF + 64 * 72 * 1024)
    a(f"""s_lshl_b32 s23, s22, 7
s_mul_i32 s24, s20, {18*2048}
s_mul_i32 s25, s21, {3*72}
s_mul_i32 s26, s20, 18
s_add_u32 s25, s25, s26
s_lshl_b32 s25, s25, 10
s_add_u32 s25, s25, {O_OFF}
s_add_u32 s26, s25, {72*1024}
s_add_u32 s27, s26, {72*1024}""")
    OPB = 112
    RING = 12
    def issue(i):
        a(f"""s_mul_i32 s28, s20, 18
s_add_u32 s28, s28, {i}
s_add_u32 m0, s24, {i*2048}
s_cmp_ge_u32 s28, 64
s_cbranch_scc1 L_outp_ext{i}
s_and_b32 s29, s28, 31
s_mul_i32 s30, s29, 18
s_and_b32 s29, s29, 1
s_lshl_b32 s29, s29, 1
s_add_u32 s30, s30, s29
s_mul_i32 s30, s30, 1152
s_add_u32 s30, s30, s23
s_add_u32 s31, s30, {8*1152}
s_cmp_ge_u32 s28, 32
s_cbranch_scc1 L_outp_b{i}
buffer_load_dwordx4 v10, s[4:7], s30 offen lds
s_add_u32 m0, m0, 1024
s_nop 0
buffer_load_dwordx4 v10, s[4:7], s31 offen lds
s_branch L_outp_j{i}
L_outp_b{i}:
buffer_load_dwordx4 v10, s[8:11], s30 offen lds
s_add_u32 m0, m0, 1024
s_nop 0
buffer_load_dwordx4 v10, s[8:11], s31 offen lds
s_branch L_outp_j{i}
L_outp_ext{i}:
s_and_b32 s29, s28, 3
s_mul_i32 s30, s29, {144*1152}
s_add_u32 s30, s30, {16*1152}
s_add_u32 s30, s30, s23
s_add_u32 s31, s30, {72*1152}
s_cmp_ge_u32 s28, 68
s_cbranch_scc1 L_outp_eb{i}
buffer_load_dwordx4 v11, s[4:7], s30 offen lds
s_add_u32 m0, m0, 1024
s_nop 0
buffer_load_dwordx4 v11, s[4:7], s31 offen lds
s_branch L_outp_j{i}
L_outp_eb{i}:
buffer_load_dwordx4 v11, s[8:11], s30 offen lds
s_add_u32 m0, m0, 1024
s_nop 0
buffer_load_dwordx4 v11, s[8:11], s31 offen lds
L_outp_j{i}:""")
        a.vm += [f"w{i}", f"w{i}"]
        for rt in range(3):
            r = OPB + (i % RING) * 12 + 4 * rt
            a.vmem(f"buffer_load_dwordx4 {vr(r,4)}, v12, s[12:15], s{25+rt} offen", f"o{i}")
            a(f"s_add_u32 s{25+rt}, s{25+rt}, 1024")
    for i in range(RING): issue(i)
    a("""v_lshrrev_b32 v3, 5, v1
v_bfe_u32 v4, v1, 2, 2
v_lshl_add_u32 v5, v3, 3, v4
v_lshlrev_b32 v5, 7, v5
v_bfe_u32 v6, v1, 4, 1
v_and_b32 v7, 3, v1
v_lshl_add_u32 v6, v6, 2, v7
v_lshlrev_b32 v6, 3, v6
v_bfe_u32 v7, v1, 3, 1
v_lshlrev_b32 v7, 6, v7
v_xor_b32 v6, v6, v7
v_add3_u32 v13, v5, v6, s24
v_xor_b32 v14, 64, v13""")
    ACC = 16
    for i in range(18):
        a.need_vm(f"w{i}", f"o{i}")
        for ct in range(2):
            for hf in range(2):
                a.ds(f"ds_read_b64_tr_b16 {vr(2+4*ct+2*hf,2)}, v{13+ct} offset:{i*2048+hf*512}", f"t{ct}")
        for ct in range(2):
            a.need_lds(f"t{ct}")
            for rt in range(3):
                A = ACC + (rt * 2 + ct) * 16
                c = "0" if i == 0 else vr(A, 16)
                a(f"v_mfma_f32_32x32x16_bf16 {vr(A,16)}, {vr(2+4*ct,4)}, {vr(OPB+(i%RING)*12+4*rt,4)}, {c}")
        if i + RING < 18: issue(i + RING)
    RS = 272
    a("s_barrier")
    a(f"""v_and_b32 v2, 31, v1
v_mul_u32_u24 v2, {RS}, v2
v_lshrrev_b32 v3, 5, v1
v_lshl_add_u32 v2, v3, 4, v2
s_mul_i32 s28, s20, {96*RS}
v_add_u32 v2, s28, v2
s_nop 6""")
    for rt in range(3):
        for ct in range(2):
            for q in range(4):
                A = ACC + (rt * 2 + ct) * 16 + 4 * q
                a(f"ds_write_b128 v2, {vr(A,4)} offset:{rt*32*RS + ct*128 + q*32}")
    a("s_waitcnt lgkmcnt(0)\ns_barrier")
    a(f"""v_lshrrev_b32 v2, 3, v0
v_and_b32 v3, 7, v0
v_mul_u32_u24 v4, {RS}, v2
v_lshl_add_u32 v4, v3, 5, v4
v_add_u32 v6, {2*96*RS}, v4
v_mul_u32_u24 v5, 1152, v2
v_lshl_add_u32 v5, v3, 4, v5
s_mul_i32 s28, s21, {96*1152}
s_add_u32 s28, s28, s23""")
    for it in range(3):
        for w in range(4):
            for hh in range(2):
                a(f"ds_read_b128 {vr(16+it*32+w*8+hh*4,4)}, v{4 if w<2 else 6} offset:{(w&1)*96*RS + it*32*RS + hh*16}")
        a("s_waitcnt lgkmcnt(0)")
        B = 16 + it * 32
        for i in range(8): a(f"v_add_f32 v{B+i}, v{B+i}, v{B+8+i}\nv_add_f32 v{B+16+i}, v{B+16+i}, v{B+24+i}")
        for i in range(8): a(f"v_add_f32 v{B+i}, v{B+i}, v{B+16+i}")
        for i in range(4): a(f"v_cvt_pk_bf16_f32 v{B+i}, v{B+2*i}, v{B+2*i+1}")
        a(f"buffer_store_dwordx4 {vr(B,4)}, v5, s[16:19], s28 offen\ns_add_u32 s28, s28, {32*1152}")
    a.label("L_outp_exit")
    return a

def kdesc(name, vgpr, sgpr=102):
    acc = (vgpr + 3) // 4 * 4
    return f""".section .rodata,"a"
.p2align 6
.amdhsa_kernel {name}
  .amdhsa_next_free_vgpr {vgpr}
  .amdhsa_next_free_sgpr {sgpr}
  .amdhsa_accum_offset {acc}
  .amdhsa_group_segment_fixed_size 0
  .amdhsa_kernarg_size 80
  .amdhsa_user_sgpr_count 2
  .amdhsa_user_sgpr_kernarg_segment_ptr 1
  .amdhsa_system_sgpr_workgroup_id_x 1
.end_amdhsa_kernel
"""

DEFAULT = dict(map="r16g2", rot="R",
               dma_at=[[(0,1),(0,3),(1,1),(1,3),(2,1),(2,3)], [(0,0),(0,2),(1,0),(1,2),(2,1),(3,0)]])

def build(opt):
    ks = [("proj_kernel", kernel_proj(opt), 256, 512, LDS_PROJ, 168),
          ("attn_kernel", kernel_attn(opt), 256, 512, LDS_ATT + 2048, 168),
          ("outp_kernel", kernel_outp(opt), 198, 256, 4 * 18 * 2048, 256)]
    out = "; gated mix of two sliding-window attention blocks (generated by hand-written generator)\n"
    for n, a, g, b, l, v in ks: out += f"; @launch kernel={n} grid=({g},1,1) block=({b},1,1) lds={l}\n"
    out += '.amdgcn_target "amdgcn-amd-amdhsa--gfx950"\n'
    for n, a, g, b, l, v in ks:
        body = a.text() + "    s_endpgm\n"
        errs = check_hazards(body)
        for e in errs: print(n, e, file=sys.stderr)
        out += f".text\n.globl {n}\n.p2align 8\n.type {n},@function\n{n}:\n" + body
    for n, a, g, b, l, v in ks: out += kdesc(n, v)
    return out

if __name__ == "__main__":
    opt = dict(DEFAULT)
    dst = f"cdna_kernels/{NAME}.s"
    for arg in sys.argv[1:]:
        k, v = arg.split("=")
        if k == "o": dst = v
        else: opt[k] = v
    open(dst, "w").write(build(opt))
    print("wrote", dst)
```

```python
import sys, math, struct
from asmdsl import *

NAME = "gated_mix__sliding_block__sliding_block__prompt"
S, D, H, DH = 2048, 576, 32, 18
XB = S * D * 2
WB = D * 3 * D * 2
WOB = D * D * 2
WSB = 268435456
KV_WG = 38912
KV_HEAD = 9728
O_OFF = 0x1000000
O_END = O_OFF + 128 * 36 * 1024
FK_OFF = 0x1800000
FO_OFF = 0x1810000
GEN_OFF = 0x1820000
ST_OFF = 0x2000000
STG = 49152
GT_OFF = 3 * STG
CTL = GT_OFF + 2048
LDS_BYTES = CTL + 64
TS = 2432
E_O, KE_O, K_O = 1024, 1280, 1408
HB = 12 * TS
QA = 4 * HB
QE = QA + 16384
GF = QE + 2048
NEG = 0xF149F2CA
QSCALE = (DH ** -0.5) * math.log2(math.e)
LOG2E = math.log2(math.e)
def f2u(f): return struct.unpack("<I", struct.pack("<f", f))[0]

def wpos(seg, c):
    if seg == 0: return c
    if seg == 1: return 10 + c
    return {7: 31, 8: 28}.get(c, 21 + c)
GATE_POS = 9
MG = [0, 5, 9, 14]
def tile_groups(name):
    def gh(seg, g): return (wpos(seg, g >> 1), g & 1)
    if name.startswith("QK"):
        g0 = MG[int(name[2])]
        return [gh(0, g0 + i) for i in range(4)] + [gh(1, g0 + i) for i in range(4)]
    if name.startswith("V"):
        a, b = int(name[1]), int(name[2])
        return [gh(2, MG[a] + i) for i in range(4)] + [gh(2, MG[b] + i) for i in range(4)]
    return [gh(0, 4), gh(0, 13), gh(1, 4), gh(1, 13), gh(2, 4), gh(2, 13), (GATE_POS, 0), (GATE_POS, 0)]
TILES = [["QK0", "QK1", "V03", "EX"], ["QK2", "QK3", "V12", "EX"]]
def tile_consts(tn):
    g = tile_groups(tn)
    lo = sum(((p * 2 + hf) << (8 * i)) for i, (p, hf) in enumerate(g[:4]))
    hi = sum(((p * 2 + hf) << (8 * i)) for i, (p, hf) in enumerate(g[4:]))
    return lo, hi

def srd(a, s, size): a(f"s_mov_b32 s{s+2}, {size}\ns_mov_b32 s{s+3}, 0x20000")

def stamp(a, opt, i):
    if opt.get("stamps"):
        a(f"s_memtime s[{70+2*i}:{71+2*i}]")
        if i == 0: a("s_memrealtime s[66:67]")
        a("s_waitcnt lgkmcnt(0)"); a.lds = []
def stamp_flush(a, opt, n):
    if not opt.get("stamps"): return
    a("s_memrealtime s[68:69]\ns_waitcnt lgkmcnt(0)")
    a("s_mov_b64 exec, 1")
    a(f"s_lshl_b32 s64, s2, 3\ns_add_u32 s64, s64, s20\ns_lshl_b32 s64, s64, 6\ns_add_u32 s64, s64, {ST_OFF}\ns_mov_b32 s14, {WSB}\nv_mov_b32 v2, 0")
    a("s_sub_u32 s65, s68, s66\nv_mov_b32 v3, s65\nbuffer_store_dword v3, v2, s[12:15], s64 offen")
    a("v_mov_b32 v3, s66\nbuffer_store_dword v3, v2, s[12:15], s64 offen offset:60")
    for i in range(1, n):
        a(f"s_sub_u32 s65, s{70+2*i}, s70\nv_mov_b32 v3, s65\nbuffer_store_dword v3, v2, s[12:15], s64 offen offset:{4*i}")

MD, MF = 192, 208
def emit_masks(a):
    a("""v_and_b32 v14, 31, v1
v_lshrrev_b32 v15, 5, v1
v_lshlrev_b32 v15, 2, v15
v_sub_u32 v14, v14, v15""")
    a(f"s_mov_b32 s32, {NEG:#x}")
    for r in range(16):
        kr = (r & 3) + 8 * (r >> 2)
        a(f"v_subrev_u32 v15, {kr}, v14\nv_ashrrev_i32 v15, 31, v15\nv_and_b32 v{MD+r}, s32, v15\nv_xor_b32 v{MF+r}, s32, v{MD+r}")

def loader(a, opt):
    a("""v_bfe_u32 v3, v0, 6, 1
v_lshrrev_b32 v4, 4, v1
v_lshl_or_b32 v4, v3, 2, v4
v_and_b32 v5, 7, v1
v_xor_b32 v4, v4, v5
v_lshrrev_b32 v5, 3, v1
v_mul_u32_u24 v5, 1152, v5
v_lshl_add_u32 v10, v4, 4, v5
v_lshrrev_b32 v4, 5, v1
v_lshl_add_u32 v5, v3, 1, v4
v_lshlrev_b32 v5, 2, v5
v_and_b32 v6, 31, v1
v_xor_b32 v6, v6, v5
v_mul_u32_u24 v4, 3456, v4
v_lshl_add_u32 v11, v6, 4, v4
v_mov_b32 v7, 992
v_cmp_le_u32 vcc, 10, v6
v_mov_b32 v8, 976
s_and_b32 s33, s20, 3
v_cndmask_b32 v7, 0, v7, vcc
v_cmp_le_u32 vcc, 21, v6
v_add_u32 v11, v11, v7
s_lshl_b32 s26, s21, 7
v_cndmask_b32 v8, 0, v8, vcc
v_cmp_eq_u32 vcc, 28, v6
v_add_u32 v11, v11, v8
s_lshl_b32 s32, s33, 3
v_cndmask_b32_e64 v7, 0, 16, vcc
v_cmp_eq_u32 vcc, 31, v6
v_add_u32 v11, v11, v7
s_add_u32 s26, s26, s32
v_cndmask_b32_e64 v7, 0, 48, vcc
v_sub_u32 v11, v11, v7""")
    valid = 0
    for seg in range(3):
        for c in range(9): valid |= 1 << wpos(seg, c)
    a(f"""s_mov_b32 s32, {valid:#x}
v_lshrrev_b32 v7, v6, s32
v_and_b32 v7, 1, v7
v_cmp_eq_u32 s[30:31], 1, v7
s_mul_i32 s26, s26, 1152
s_mul_i32 s27, s33, 6912
s_and_b32 s32, s22, 7
s_mul_i32 s32, s32, 144
s_add_u32 s27, s27, s32
s_lshl_b32 s29, s33, 10
v_lshlrev_b32 v3, 4, v1""")
    if opt["rot"] == "none": a("s_mov_b32 s25, 0")
    else: a("s_cmp_ge_u32 s21, 9\ns_cselect_b32 s32, 9, 0\ns_sub_u32 s25, s21, s32")
    a("s_mov_b32 s28, 0\ns_waitcnt lgkmcnt(0)")
    a("s_cmp_ge_u32 s22, 8\ns_cselect_b32 s8, s34, s8\ns_cselect_b32 s9, s35, s9")
    common_srds(a)
    def issue_stage():
        a("""s_lshl_b32 s36, s25, 7
s_add_u32 s36, s36, s26
s_add_u32 m0, s28, s29
s_mul_i32 s37, s25, 221184
s_add_u32 s37, s37, s27""")
        for j in range(4):
            a("buffer_load_dwordx4 v10, s[4:7], s36 offen lds\ns_add_u32 m0, m0, 0x1000")
            a(f"s_add_u32 s36, s36, {32*1152}" if j < 3 else "s_mov_b64 exec, s[30:31]")
        for j in range(8):
            a("buffer_load_dwordx4 v11, s[8:11], s37 offen lds")
            if j < 7: a(f"s_add_u32 m0, m0, 0x1000\ns_add_u32 s37, s37, {8*3456}")
        a("s_mov_b64 exec, -1")
    def advance():
        a(f"""s_add_u32 s25, s25, 1
s_cmp_eq_u32 s25, 9
s_cselect_b32 s25, 0, s25
s_add_u32 s28, s28, {STG}
s_cmp_eq_u32 s28, {3*STG}
s_cselect_b32 s28, 0, s28""")
    stamp(a, opt, 1)
    a(f"s_mov_b32 m0, {GT_OFF}\ns_mov_b32 s38, s25")
    a("buffer_load_dwordx4 v3, s[16:19], 0 offen lds\nbuffer_load_dwordx4 v3, s[16:19], 0 offen offset:1024 lds")
    issue_stage(); advance()
    a("s_mov_b32 s39, s25")
    a(f"""v_lshlrev_b32 v12, 1, v1
v_add_u32 v12, {GT_OFF}, v12
v_and_b32 v13, 3, v1
v_lshlrev_b32 v13, 2, v13
v_xor_b32 v13, {GATE_POS}, v13
v_lshlrev_b32 v13, 4, v13
v_lshl_add_u32 v13, v1, 9, v13
v_add_u32 v13, 0x4000, v13""")
    issue_stage(); advance()
    a(f"""s_waitcnt vmcnt(24)
s_lshl_b32 s32, s38, 7
s_lshl_b32 s33, s39, 7
v_add_u32 v8, s32, v12
v_add_u32 v9, s33, v12
ds_read_u16 v6, v8
ds_read_u16 v7, v9
s_waitcnt lgkmcnt(0)
ds_write_b16 v13, v6
ds_write_b16 v13, v7 offset:{STG}""")
    emit_masks(a)
    a("s_mov_b32 s24, 0")
    a.label("L_ld_loop")
    a("s_waitcnt vmcnt(12) lgkmcnt(0)\ns_barrier")
    a("s_lshl_b32 s32, s25, 7\nv_add_u32 v8, s32, v12\nv_add_u32 v9, s28, v13\nds_read_u16 v6, v8")
    issue_stage()
    a("s_waitcnt lgkmcnt(0)\nds_write_b16 v9, v6")
    advance()
    a("s_add_u32 s24, s24, 1\ns_cmp_lt_u32 s24, 7\ns_cbranch_scc1 L_ld_loop")
    a("""s_lshr_b32 s32, s2, 3
s_lshl_b32 s32, s32, 2
s_add_u32 s32, s32, 64
v_lshlrev_b32 v4, 3, v1
v_add_u32 v4, s32, v4
v_cmp_eq_u32 vcc, 0, v1
s_and_b32 s33, s2, 7
s_lshl_b32 s33, s33, 2
v_cndmask_b32_e64 v4, v4, 0, vcc
s_mov_b64 exec, 7
buffer_load_dword v5, v4, s[60:63], 0 offen sc1
s_mov_b64 exec, -1
s_waitcnt vmcnt(13) lgkmcnt(0)
s_barrier""")
    a("s_waitcnt vmcnt(0)\ns_barrier")
    a.label("L_tag_check")
    a("""v_readlane_b32 s23, v5, 0
v_readlane_b32 s34, v5, 1
v_readlane_b32 s35, v5, 2
s_getreg_b32 s36, hwreg(HW_REG_XCC_ID, 0, 4)
s_or_b32 s36, s36, 8
s_lshr_b32 s34, s34, s33
s_lshr_b32 s35, s35, s33
s_and_b32 s34, s34, 15
s_and_b32 s35, s35, 15
s_cmp_ge_u32 s21, 15
s_cselect_b32 s34, s36, s34
s_cmp_ge_u32 s21, 14
s_cselect_b32 s35, s36, s35
s_and_b32 s37, s34, s35
s_and_b32 s37, s37, s23
s_bitcmp1_b32 s37, 3
s_cbranch_scc1 L_tag_ok
s_sub_u32 s99, s99, 1
s_cbranch_scc1 L_tag_ok
s_sleep 2
s_mov_b64 exec, 7
buffer_load_dword v5, v4, s[60:63], 0 offen sc1
s_mov_b64 exec, -1
s_waitcnt vmcnt(0)
s_branch L_tag_check""")
    a.label("L_tag_ok")
    a(f"""s_xor_b32 s34, s34, s36
s_xor_b32 s35, s35, s36
s_or_b32 s34, s34, s35""")
    if opt.get("forcecross"): a("s_mov_b32 s34, 1")
    a(f"""v_mov_b32 v6, s23
v_mov_b32 v7, s34
v_mov_b32 v8, {CTL}
ds_write_b64 v8, v[6:7]
s_waitcnt lgkmcnt(0)
s_barrier""")
    stamp(a, opt, 2)

def common_srds(a):
    srd(a, 4, XB); srd(a, 8, WB); srd(a, 12, WSB); srd(a, 16, D * 2); srd(a, 52, WOB); srd(a, 56, WOB); srd(a, 60, 256)
    a("s_mov_b32 s48, s12\ns_mov_b32 s49, s13\ns_mov_b32 s50, 0\ns_mov_b32 s51, 0x20000")

ACC = 64
BUF = [16, 40]
def computer(a, opt):
    a("""s_and_b32 s44, s20, 1
s_lshr_b32 s45, s20, 1
s_lshl_b32 s46, s44, 1
s_add_u32 s46, s46, s45
s_lshl_b32 s32, s46, 12
v_and_b32 v14, 31, v1
v_lshrrev_b32 v15, 5, v1
v_bfe_u32 v16, v1, 1, 3
v_xor_b32 v16, v16, v15
v_lshlrev_b32 v16, 4, v16
v_lshl_add_u32 v16, v14, 7, v16
v_add_u32 v2, s32, v16
v_xor_b32 v3, 32, v2
v_xor_b32 v4, 64, v2
v_xor_b32 v5, 0x60, v2
v_xor_b32 v6, 0x1000, v2
v_xor_b32 v7, 0x1000, v3
v_xor_b32 v8, 0x1000, v4
v_xor_b32 v9, 0x1000, v5
v_bfe_u32 v16, v1, 2, 2
v_lshl_add_u32 v17, v15, 3, v16
v_lshlrev_b32 v17, 9, v17
v_lshlrev_b32 v16, 6, v16
v_and_b32 v18, 3, v1
v_lshlrev_b32 v18, 3, v18
v_and_b32 v19, 16, v1
v_cmp_ne_u32 s[40:41], 0, v19
s_cmp_eq_u32 s45, 0""")
    for ti in range(4):
        l0, h0 = tile_consts(TILES[0][ti]); l1, h1 = tile_consts(TILES[1][ti])
        a(f"""s_mov_b32 s36, {l1:#x}
s_mov_b32 s37, {h1:#x}
s_cselect_b32 s36, {l0:#x}, s36
s_cselect_b32 s37, {h0:#x}, s37
v_mov_b32 v20, s36
v_mov_b32 v21, s37
v_cndmask_b32_e64 v20, v20, v21, s[40:41]
v_bfe_u32 v20, v20, v18, 8
v_lshlrev_b32 v20, 3, v20
v_xor_b32 v20, v20, v16
v_add_u32 v{10+ti}, v20, v17""")
    a("s_waitcnt lgkmcnt(0)")
    common_srds(a)
    a("""s_cmp_lg_u32 s20, 0
s_cbranch_scc1 L_c_noxcc
s_getreg_b32 s36, hwreg(HW_REG_XCC_ID, 0, 4)
s_or_b32 s36, s36, 8
s_and_b32 s33, s2, 7
s_lshl_b32 s33, s33, 2
s_lshl_b32 s36, s36, s33
s_lshr_b32 s32, s2, 3
s_lshl_b32 s32, s32, 2
s_add_u32 s32, s32, 64
v_mov_b32 v20, s36
v_mov_b32 v21, 0
s_mov_b64 exec, 1
buffer_atomic_or v20, v21, s[60:63], s32 offen
s_cmp_lg_u32 s2, 0
s_cbranch_scc1 L_c_notag""")
    a(f"""s_mov_b32 s32, {GEN_OFF}
buffer_load_dword v22, v21, s[12:15], s32 offen sc1
s_waitcnt vmcnt(0)
v_lshrrev_b32 v22, 4, v22
s_mov_b32 s33, 0x2c9277b5
v_mul_lo_u32 v22, v22, s33
v_add_u32 v22, 0xac564b05, v22
v_lshl_or_b32 v22, v22, 4, 8
buffer_store_dword v22, v21, s[60:63], 0 offen sc1
buffer_store_dword v22, v21, s[12:15], s32 offen sc1""")
    a.label("L_c_notag")
    a("s_mov_b64 exec, -1")
    a.label("L_c_noxcc")
    for r in range(ACC, ACC + 112): a(f"v_mov_b32 v{r}, 0")
    emit_masks(a)
    stamp(a, opt, 1)
    def reads(ks, b):
        B = BUF[b]
        def w(ti): return [(f"ds_read_b64_tr_b16 {vr(B+8+4*ti+2*hf,2)}, v{10+ti} offset:{16384+ks*8192+hf*2048}", f"w{ti}") for hf in range(2)]
        return [(f"ds_read_b128 {vr(B,4)}, v{2+ks}", "x0")] + w(0) + [(f"ds_read_b128 {vr(B+4,4)}, v{6+ks}", "x1")] + w(1) + w(2) + w(3)
    MM = [(0, 0), (0, 1), (1, 0), (1, 1), (2, 0), (2, 1), (3, 0)]
    def acc(m): return ACC + 16 * m
    a("s_mov_b32 s24, 0\ns_mov_b32 s42, 0\ns_barrier")
    for o, t in reads(0, 0): a.ds(o, t + "A")
    a.label("L_c_loop")
    for ks in range(4):
        cb = ks & 1; nb = cb ^ 1
        cn, nn = "AB"[cb], "AB"[nb]
        rd = reads((ks + 1) & 3, nb)
        per = [2, 2, 2, 2, 2, 0, 0] if ks < 3 else [0, 2, 2, 2, 2, 2, 0]
        k = 0
        for m, (ti, xi) in enumerate(MM):
            a.need_lds(f"x{xi}{cn}", f"w{ti}{cn}")
            B = BUF[cb]
            a(f"v_mfma_f32_32x32x16_bf16 {vr(acc(m),16)}, {vr(B+8+4*ti,4)}, {vr(B+4*xi,4)}, {vr(acc(m),16)}")
            if ks == 3 and m == 1:
                a.wait_all(vm=False); a("s_barrier")
                if opt.get("stamps"):
                    a("s_memtime s[64:65]\ns_waitcnt lgkmcnt(0)\ns_sub_u32 s64, s64, s70\ns_mov_b32 m0, s24\ns_nop 0\nv_writelane_b32 v255, s64, m0")
            for o, t in rd[k:k + per[m]]: a.ds(o, t + nn)
            k += per[m]
            if ks == 1 and m == 5:
                a(f"""s_add_u32 s42, s42, 1
s_cmp_eq_u32 s42, 3
s_cselect_b32 s42, 0, s42""")
            if ks == 1 and m == 6:
                a(f"s_mov_b32 s32, {STG}\ns_cselect_b32 s32, {(-2*STG) & 0xffffffff:#x}, s32")
                for r in (2, 6): a(f"v_add_u32 v{r}, s32, v{r}")
            if ks == 2 and m == 4:
                for r in (3, 7): a(f"v_add_u32 v{r}, s32, v{r}")
            if ks == 2 and m == 5:
                for r in (4, 8, 5, 9): a(f"v_add_u32 v{r}, s32, v{r}")
            if ks == 2 and m == 6:
                for r in (10, 11, 12, 13): a(f"v_add_u32 v{r}, s32, v{r}")
            if ks == 3 and m == 5: a("s_add_u32 s24, s24, 1\ns_cmp_lt_u32 s24, 9")
    a("s_cbranch_scc1 L_c_loop")
    stamp(a, opt, 2)
    a(f"""v_mov_b32 v2, {CTL}
ds_read_b64 v[2:3], v2
s_xor_b32 s47, s46, 1
s_lshl_b32 s32, s22, 4
s_add_u32 s32, s32, s21
s_mul_i32 s43, s32, {KV_WG}
s_cmp_lt_u32 s21, 15
s_cselect_b32 s50, {WSB}, 0
v_lshlrev_b32 v4, 4, v1
v_lshrrev_b32 v5, 5, v1
v_lshlrev_b32 v6, 6, v5
v_xor_b32 v6, v6, v4
v_add_u32 v7, {K_O}, v4
v_and_b32 v8, 31, v1
v_lshlrev_b32 v9, 2, v8
v_bfe_u32 v10, v1, 3, 1
v_xor_b32 v10, 1, v10
v_lshlrev_b32 v10, 7, v10
v_bfe_u32 v11, v1, 4, 1
v_lshl_add_u32 v10, v11, 6, v10
v_and_b32 v11, 7, v1
v_lshl_add_u32 v10, v11, 3, v10
s_waitcnt lgkmcnt(0)
v_readfirstlane_b32 s23, v2
v_readfirstlane_b32 s25, v3""")
    a.lds = []
    a(f"s_mul_i32 s34, s46, {TS}\ns_mul_i32 s35, s47, {TS}")
    a(f"""s_lshl_b32 s36, s45, 1
s_sub_u32 s37, 3, s45
s_cmp_lg_u32 s25, 0
s_cbranch_scc1 L_epi_cross""")
    for cross in (0, 1):
        fl = " sc1" if cross else ""
        if cross: a.label("L_epi_cross")
        t = 16
        def put(src8, hs, hadd, rts, lane_v):
            nonlocal t
            a(f"""s_mul_i32 s38, s{hs}, {HB}
s_mul_i32 s39, s{hs}, {KV_HEAD}
s_add_u32 s38, s38, s{rts}
s_add_u32 s39, s39, s{rts}""")
            for i in range(4): a(f"v_cvt_pk_bf16_f32 v{t+i}, v{src8+2*i}, v{src8+2*i+1}")
            a(f"v_add_u32 v12, s38, v{lane_v}\ns_add_u32 s39, s39, s43")
            if hadd: a(f"s_add_u32 s39, s39, {hadd*KV_HEAD}")
            a(f"buffer_store_dwordx4 {vr(t,4)}, v{lane_v}, s[48:51], s39 offen{fl}")
            a(f"ds_write_b128 v12, {vr(t,4)} offset:{8*TS + hadd*HB}")
            t += 4
        for xi in range(2):
            put(acc(0 + xi) + 8, 36, 0, 34 + xi, 7)
            put(acc(2 + xi) + 8, 36, 1, 34 + xi, 7)
            put(acc(4 + xi), 45, 0, 34 + xi, 6)
            put(acc(4 + xi) + 8, 37, 0, 34 + xi, 6)
        E = acc(6)
        a(f"""v_cvt_pk_bf16_f32 v48, v{E+4}, v{E+5}
v_cvt_pk_bf16_f32 v49, v{E+6}, v{E+7}
v_cvt_pk_bf16_f32 v50, v{E+8}, v{E+9}
v_mov_b32 v51, 0x3f80
v_cvt_pk_bf16_f32 v52, v{E+10}, v{E+11}
v_mov_b32 v53, 0x3f80
v_mul_u32_u24 v12, {2*KV_HEAD}, v5
v_mul_u32_u24 v13, {2*HB}, v5
s_add_u32 s39, s43, s34
s_add_u32 s38, s39, {KV_HEAD}
v_add_u32 v14, v12, v9
v_add_u32 v12, v12, v10
buffer_store_dword v48, v14, s[48:51], s39 offen offset:{KE_O}{fl}
buffer_store_dword v49, v14, s[48:51], s38 offen offset:{KE_O}{fl}
buffer_store_dwordx2 v[50:51], v12, s[48:51], s39 offen offset:{E_O}{fl}
buffer_store_dwordx2 v[52:53], v12, s[48:51], s38 offen offset:{E_O}{fl}""")
        if not cross: a("s_branch L_epi_join")
    a.label("L_epi_join")
    E = acc(6)
    a(f"""v_add3_u32 v14, v13, v9, s34
v_add3_u32 v13, v13, v10, s34
ds_write_b32 v14, v48 offset:{8*TS + KE_O}
ds_write_b32 v14, v49 offset:{8*TS + KE_O + HB}
ds_write_b64 v13, v[50:51] offset:{8*TS + E_O}
ds_write_b64 v13, v[52:53] offset:{8*TS + E_O + HB}
s_mov_b32 s38, {f2u(QSCALE):#x}
s_mov_b32 s39, s38
s_mov_b32 s40, {f2u(-LOG2E):#x}
s_cmp_ge_u32 s22, 8
s_cselect_b32 s40, {f2u(LOG2E):#x}, s40
v_mul_f32 v{E+12}, s40, v{E+12}
v_exp_f32 v{E+12}, v{E+12}
v_pk_mul_f32 {vr(E,2)}, {vr(E,2)}, s[38:39]
v_pk_mul_f32 {vr(E+2,2)}, {vr(E+2,2)}, s[38:39]
v_add_f32 v{E+12}, 1.0, v{E+12}
s_lshl_b32 s40, s46, 7
s_add_u32 s41, s40, {QE}
s_add_u32 s40, s40, {GF}
v_lshlrev_b32 v13, 10, v5
v_add3_u32 v13, v13, v9, s41
v_add_u32 v14, s40, v9
v_cvt_pk_bf16_f32 v54, v{E}, v{E+1}
v_cvt_pk_bf16_f32 v55, v{E+2}, v{E+3}
ds_write_b32 v14, v{E+12}
ds_write_b32 v13, v54
ds_write_b32 v13, v55 offset:512
s_lshl_b32 s40, s45, 13
s_add_u32 s40, s40, {QA}
s_lshl_b32 s41, s46, 10
s_add_u32 s41, s41, s40
v_add_u32 v13, s41, v4
s_lshl_b32 s41, s47, 10
s_add_u32 s41, s41, s40
v_add_u32 v14, s41, v4""")
    for xi in range(2):
        for hh in range(2):
            A = acc(2 * hh + xi)
            for i in range(4): a(f"v_pk_mul_f32 {vr(A+2*i,2)}, {vr(A+2*i,2)}, s[38:39]")
            for i in range(4): a(f"v_cvt_pk_bf16_f32 v{A+i}, v{A+2*i}, v{A+2*i+1}")
            a(f"ds_write_b128 v{13+xi}, {vr(A,4)} offset:{hh*4096}")

OA, OB, S0, S1, PP = 64, 80, 96, 112, 24
QAm, QAe, QBm, QBe = 32, 36, 40, 44
KB = [48, 54]
VLO, VHI = 128, 132
AK, AKE, AV = 2, 3, 8
GA, GBr = 60, 61

def attn_setup(a):
    a(f"""s_and_b32 s45, s20, 3
s_cmp_lt_u32 s20, 4
s_cselect_b32 s46, 2, 0
s_mul_i32 s43, s45, {HB}
s_mul_i32 s32, s46, {TS}
s_add_u32 s32, s32, s43
v_lshlrev_b32 v5, 4, v1
v_and_b32 v6, 31, v1
v_lshlrev_b32 v6, 2, v6
s_lshl_b32 s33, s45, 2
s_add_u32 s33, s33, s46
s_lshl_b32 s34, s33, 10
s_add_u32 s34, s34, {QA}
v_add_u32 v12, s34, v5
s_lshl_b32 s34, s33, 7
s_add_u32 s34, s34, {QE}
v_add_u32 v13, s34, v6
s_lshl_b32 s34, s46, 7
s_add_u32 s34, s34, {GF}
v_add_u32 v14, s34, v6
v_add_u32 v{AK}, s32, v5
v_add_u32 v{AKE}, s32, v6
v_lshrrev_b32 v7, 5, v1
v_bfe_u32 v15, v1, 2, 2
v_bfe_u32 v16, v1, 1, 1
v_xor_b32 v17, v7, v16
v_lshl_add_u32 v17, v17, 2, v15
v_lshlrev_b32 v17, 4, v17
v_lshl_add_u32 v17, v16, 9, v17
v_and_b32 v16, 1, v1
v_lshl_add_u32 v17, v16, 3, v17
v_lshlrev_b32 v15, 3, v15
v_lshl_add_u32 v15, v7, 5, v15
v_and_b32 v16, 16, v1
v_cmp_ne_u32 vcc, 0, v16
v_add_u32 v17, s32, v17
v_add_u32 v15, s32, v15""")
    for b in range(4):
        a(f"""v_add_u32 v18, {b*128}, v17
v_add_u32 v19, {E_O + ((b&1)^1)*128 + (b>>1)*64}, v15
v_cndmask_b32 v{AV+b}, v18, v19, vcc""")
    for r in (QAe+1, QAe+2, QAe+3, QBe+1, QBe+2, QBe+3, KB[0]+1, KB[1]+1): a(f"v_mov_b32 v{r}, 0")
    a("v_subrev_u32 v7, 1, v7")

def attn_loadq(a):
    a.ds(f"ds_read_b32 v{QBe}, v13 offset:128", "q")
    a.ds(f"ds_read_b32 v{QAe}, v13", "q")
    a.ds(f"ds_read_b128 {vr(QBm,4)}, v12 offset:1024", "q2")
    a.ds(f"ds_read_b128 {vr(QAm,4)}, v12", "q2")
    a.ds(f"ds_read_b32 v{GA}, v14", "q2")
    a.ds(f"ds_read_b32 v{GBr}, v14 offset:128", "q2")

ITEMS = [("b", 9, MD), ("a", 8, MD), ("b", 8, None)]
for _j in range(7, 1, -1): ITEMS += [("a", _j, None), ("b", _j, None)]
ITEMS += [("a", 1, None), ("b", 1, MF), ("a", 0, MF)]

def attn_main(a, opt, hook):
    items = ITEMS; n = len(items)
    def ldK(j):
        kb = KB[j & 1]
        hook("ldK", j)
        a.ds(f"ds_read_b32 v{kb}, v{AKE} offset:{j*TS+KE_O}", f"k{j}")
        a.ds(f"ds_read_b128 {vr(kb+2,4)}, v{AK} offset:{j*TS+K_O}", f"k{j}")
    def ldV(j, m):
        vb = VLO if m == 0 else VHI
        for hf in range(2):
            a.ds(f"ds_read_b64_tr_b16 {vr(vb+2*hf,2)}, v{AV+2*m+hf} offset:{j*TS}", f"v{j}_{m}")
    def qk(i, part):
        t, j, mask = items[i]
        Sx = S0 if i % 2 == 0 else S1
        kb = KB[j & 1]
        a.need_lds(f"k{j}", "q2")
        if part == 0:
            c = "0" if mask is None else vr(mask, 16)
            a(f"v_mfma_f32_32x32x16_bf16 {vr(Sx,16)}, {vr(kb,4)}, {vr(QAe if t=='a' else QBe,4)}, {c}")
        else:
            a(f"v_mfma_f32_32x32x16_bf16 {vr(Sx,16)}, {vr(kb+2,4)}, {vr(QAm if t=='a' else QBm,4)}, {vr(Sx,16)}")
    first = {"a": True, "b": True}
    def pv(i, m):
        t, j, mask = items[i]
        O = OA if t == "a" else OB
        a.need_lds(f"v{j}_{m}")
        c = "0" if first[t] else vr(O, 16)
        first[t] = False
        a(f"v_mfma_f32_32x32x16_bf16 {vr(O,16)}, {vr(VLO if m==0 else VHI,4)}, {vr(PP+4*m,4)}, {c}")
    def ex(i, g):
        Sx = S0 if i % 2 == 0 else S1
        for e in range(4): a(f"v_exp_f32 v{Sx+4*g+e}, v{Sx+4*g+e}")
        for c in range(2): a(f"v_cvt_pk_bf16_f32 v{PP+2*g+c}, v{Sx+4*g+2*c}, v{Sx+4*g+2*c+1}")
    attn_loadq(a)
    ldK(9); ldK(8); ldV(9, 0); ldV(9, 1)
    a.need_lds("q")
    a(f"v_and_b32 v{QAe}, v{QAe}, v7\nv_and_b32 v{QBe}, v{QBe}, v7\ns_nop 1")
    qk(0, 0); qk(0, 1)
    a("s_nop 10")
    loadedK = {9, 8}
    for i in range(n):
        t, j, mask = items[i]
        nxt = i + 1 < n
        hook("item", i)
        if nxt: qk(i + 1, 0)
        ex(i, 0)
        if nxt: qk(i + 1, 1)
        if i + 2 < n and items[i + 2][1] not in loadedK and items[i + 2][1] % 2 == 0:
            ldK(items[i + 2][1]); loadedK.add(items[i + 2][1])
        ex(i, 1)
        if i > 0:
            pv(i - 1, 1)
            if items[i - 1][1] != j: ldV(j, 1)
        ex(i, 2)
        if i + 2 < n and items[i + 2][1] not in loadedK:
            ldK(items[i + 2][1]); loadedK.add(items[i + 2][1])
        pv(i, 0)
        if nxt and items[i + 1][1] != j: ldV(items[i + 1][1], 0)
        ex(i, 3)
    a("s_nop 1")
    pv(n - 1, 1)

def halo_fetch(a, opt):
    a(f"""s_lshl_b32 s32, s22, 4
s_add_u32 s32, s32, s21
s_lshl_b32 s33, s32, 7
s_add_u32 s33, s33, {FK_OFF - 256}
v_lshrrev_b32 v20, 2, v1
v_and_b32 v21, 3, v1
v_lshlrev_b32 v21, 2, v21
v_lshl_add_u32 v20, v20, 7, v21
s_sub_u32 s32, s32, 1
s_mul_i32 s44, s32, {KV_WG}
s_mul_i32 s34, s45, {KV_HEAD}
s_add_u32 s44, s44, s34""")
    a("""s_cmp_eq_u32 s21, 0
s_cbranch_scc1 L_halo_go
s_cmp_eq_u32 s21, 1
s_cselect_b32 exec_lo, 0xf0, 0xff
s_mov_b32 exec_hi, 0""".replace("s_cselect_b32 exec_lo, 0xf0, 0xff", "s_movk_i32 s34, 0xff\ns_cselect_b32 exec_lo, 0xf0, s34"))
    a.label("L_halo_poll")
    a("""buffer_load_dword v21, v20, s[12:15], s33 offen sc1
s_waitcnt vmcnt(0)
v_cmp_ne_u32 vcc, s23, v21
s_cbranch_vccz L_halo_ok
s_sub_u32 s99, s99, 1
s_cbranch_scc1 L_halo_ok
s_sleep 1
s_branch L_halo_poll""")
    a.label("L_halo_ok")
    a("s_mov_b64 exec, -1")
    a.label("L_halo_go")
    for b in (1, 0):
        a(f"""s_cmp_ge_u32 s21, {2-b}
s_cselect_b32 s50, {WSB}, 0
s_cselect_b32 s36, s44, 0
s_add_u32 m0, s43, {b*4*TS}""")
        for i in range(10):
            if i == 9: a("s_mov_b32 exec_hi, 0")
            elif i == 0: a("s_nop 0")
            a("buffer_load_dwordx4 v5, s[48:51], s36 offen sc1 lds")
            if i < 9: a("s_add_u32 m0, m0, 1024\ns_add_u32 s36, s36, 1024")
        a("s_mov_b64 exec, -1")
        if b == 1: a(f"s_sub_u32 s44, s44, {KV_WG}")

def attn_finish(a, opt):
    a(f"""s_lshl_b32 s32, s21, 2
s_add_u32 s32, s32, s46
s_mul_i32 s32, s32, 72
s_lshl_b32 s33, s22, 1
s_add_u32 s32, s32, s33
s_lshr_b32 s33, s45, 1
s_add_u32 s32, s32, s33
s_lshl_b32 s32, s32, 10
s_and_b32 s33, s45, 1
s_lshl_b32 s33, s33, 9
s_add_u32 s32, s32, s33
s_add_u32 s36, s32, {O_OFF}
s_add_u32 s37, s36, {72*1024}
v_and_b32 v12, 15, v1
v_lshlrev_b32 v12, 4, v12
v_lshrrev_b32 v13, 5, v1
v_lshl_add_u32 v12, v13, 8, v12
v_bfe_u32 v13, v1, 4, 1
v_mul_u32_u24 v13, {36*1024}, v13
v_add_u32 v12, v12, v13
s_lshl_b32 s33, s46, 9
s_lshl_b32 s34, s45, 2
s_add_u32 s33, s33, s34
s_add_u32 s33, s33, {GT_OFF}
v_lshl_add_u32 v13, v6, 2, s33""")
    for t, O, g, so, lo in (("b", OB, GBr, 37, 512), ("a", OA, GA, 36, 0)):
        T = S0 if t == "b" else S1
        a(f"v_mul_f32 v{g}, v{g}, v{O+10}\nv_rcp_f32 v{g}, v{g}\ns_nop 0")
        for i in range(10): a(f"v_mul_f32 v{O+i}, v{O+i}, v{g}")
        for i in range(5): a(f"v_cvt_pk_bf16_f32 v{T+i}, v{O+2*i}, v{O+2*i+1}")
        a(f"buffer_store_dwordx4 {vr(T,4)}, v12, s[12:15], s{so} offen sc1")
        a(f"ds_write_b32 v13, v{T+4} offset:{lo}")

def outproj(a, opt):
    a("""s_and_b32 s32, s2, 7
s_mul_i32 s32, s32, 30
s_lshr_b32 s33, s2, 3
s_add_u32 s32, s32, s33
s_cmp_lt_u32 s33, 30
s_cselect_b32 s32, s32, 255
s_mul_i32 s40, s32, 7282
s_lshr_b32 s40, s40, 16
s_mul_i32 s41, s40, 9
s_sub_u32 s41, s32, s41
s_lshl_b32 s41, s41, 7
s_cmp_lt_u32 s32, 234
s_cselect_b32 s42, 1, 0""")
    a("""v_lshrrev_b32 v14, 3, v1
v_bfe_u32 v15, v1, 4, 1
v_lshlrev_b32 v15, 1, v15
v_and_b32 v16, 7, v1
v_xor_b32 v15, v15, v16
v_lshlrev_b32 v15, 4, v15
v_mul_u32_u24 v16, 1152, v14
v_add_u32 v16, v16, v15
v_xor_b32 v17, 64, v16
v_lshrrev_b32 v18, 5, v1
v_mul_u32_u24 v18, 36864, v18
v_add_u32 v18, v18, v16
v_xor_b32 v19, 64, v18""")
    a("s_waitcnt lgkmcnt(0)\ns_barrier")
    stamp(a, opt, 8)
    a(f"""s_cmp_ge_u32 s20, 2
s_cbranch_scc1 L_noext
s_lshl_b32 s33, s20, 10
s_add_u32 s33, s33, {GT_OFF}
v_add_u32 v14, s33, v5
ds_read_b128 v[20:23], v14
s_lshl_b32 s32, s21, 3
s_lshl_b32 s33, s20, 2
s_add_u32 s32, s32, s33
s_mul_i32 s32, s32, 36
s_lshr_b32 s33, s22, 2
s_add_u32 s32, s32, s33
s_add_u32 s32, s32, 32
s_lshl_b32 s32, s32, 10
s_and_b32 s33, s22, 3
s_lshl_b32 s33, s33, 8
s_add_u32 s32, s32, s33
s_add_u32 s32, s32, {O_OFF}
v_lshrrev_b32 v14, 4, v1
v_mul_u32_u24 v14, {36*1024}, v14
v_and_b32 v15, 15, v1
v_lshl_add_u32 v14, v15, 4, v14
s_waitcnt lgkmcnt(0)
buffer_store_dwordx4 v[20:23], v14, s[12:15], s32 offen sc1""")
    a.label("L_noext")
    a(f"""s_cmp_ge_u32 s20, 4
s_cselect_b32 s52, s56, s52
s_cselect_b32 s53, s57, s53
s_cmp_eq_u32 s42, 1
s_cselect_b32 s54, {WOB}, 0
s_and_b32 s32, s20, 3
s_mul_i32 s33, s32, {144*1152}
s_add_u32 s33, s33, s41
s_lshl_b32 m0, s20, 14
s_add_u32 s34, s33, {16*1152}""")
    for k in range(4):
        for q, dr in enumerate((8, 12, 8, 8)):
            a(f"buffer_load_dwordx4 v{16 + (q & 1)}, s[52:55], s33 offen lds\ns_add_u32 m0, m0, 1024\ns_add_u32 s33, s33, {dr*1152}")
    a(f"""s_lshl_b32 m0, s20, 11
s_add_u32 m0, m0, {32*4096}
s_nop 0
buffer_load_dwordx4 v18, s[52:55], s34 offen lds
s_add_u32 m0, m0, 1024
s_add_u32 s34, s34, {72*1152}
buffer_load_dwordx4 v19, s[52:55], s34 offen lds
s_waitcnt vmcnt(18)
s_barrier""")
    stamp(a, opt, 9)
    a(f"""s_cmp_lg_u32 s20, 0
s_cbranch_scc1 L_noflag
s_lshl_b32 s32, s21, 4
s_add_u32 s32, s32, s22
s_lshl_b32 s32, s32, 7
s_add_u32 s32, s32, {FO_OFF}
v_mov_b32 v14, 0
v_mov_b32 v15, s23
s_mov_b64 exec, 1
buffer_store_dword v15, v14, s[12:15], s32 offen sc1
s_mov_b64 exec, -1""")
    a.label("L_noflag")
    a("s_cmp_eq_u32 s42, 0\ns_cbranch_scc1 L_end")
    a("""s_and_b32 s44, s20, 3
s_lshr_b32 s45, s20, 2
s_mul_i32 s32, s44, 36864
v_lshrrev_b32 v14, 4, v1
v_bfe_u32 v15, v1, 2, 2
v_lshl_add_u32 v20, v14, 3, v15
v_lshlrev_b32 v20, 7, v20
v_and_b32 v21, 3, v1
v_lshl_add_u32 v20, v21, 3, v20
v_bfe_u32 v21, v1, 3, 2
v_lshl_add_u32 v20, v21, 5, v20
v_add_u32 v28, s32, v20
v_xor_b32 v29, 32, v28
v_xor_b32 v30, 64, v28
v_xor_b32 v31, 0x60, v28""")
    a(f"""s_cmp_lg_u32 s20, 1
s_cbranch_scc1 L_nopoll
s_mul_i32 s32, s40, 80
s_add_u32 s33, s32, 79
s_lshr_b32 s32, s32, 7
s_lshr_b32 s33, s33, 7
s_min_u32 s33, s33, 15
s_sub_u32 s33, s33, s32
s_lshl_b32 s32, s32, 11
s_add_u32 s32, s32, {FO_OFF}
v_lshlrev_b32 v20, 7, v1
s_cmp_eq_u32 s33, 0
s_cselect_b32 exec_lo, 0xffff, -1
s_mov_b32 exec_hi, 0""")
    a.label("L_opoll")
    a("""buffer_load_dword v21, v20, s[12:15], s32 offen sc1
s_waitcnt vmcnt(0)
v_cmp_ne_u32 vcc, s23, v21
s_cbranch_vccz L_opoll_ok
s_sub_u32 s99, s99, 1
s_cbranch_scc1 L_opoll_ok
s_sleep 1
s_branch L_opoll""")
    a.label("L_opoll_ok")
    a("s_mov_b64 exec, -1")
    a.label("L_nopoll")
    a(f"""s_mul_i32 s32, s40, 5
s_mul_i32 s33, s45, 3
s_add_u32 s32, s32, s33
s_mul_i32 s32, s32, 36
s_mul_i32 s33, s44, 9
s_add_u32 s32, s32, s33
s_lshl_b32 s32, s32, 10
s_add_u32 s36, s32, {O_OFF}
s_add_u32 s37, s36, {36*1024}
s_add_u32 s38, s37, {36*1024}
s_mov_b32 s50, {O_END}
s_load_dwordx2 s[16:17], s[0:1], 56
s_waitcnt vmcnt(0)
s_barrier""")
    stamp(a, opt, 10)
    OPB, AC, WF = 96, 32, 80
    RS = 272
    a("s_cmp_eq_u32 s45, 1\ns_cbranch_scc1 L_op_rh1")
    for rh, nrt in ((0, 3), (1, 2)):
        if rh: a.label("L_op_rh1")
        a.vm = []; a.lds = []
        for i in range(9):
            for rt in range(nrt):
                if i % 4 == 0 and i: a(f"s_add_u32 s{36+rt}, s{36+rt}, 4096")
                a.vmem(f"buffer_load_dwordx4 {vr(OPB+(i*3+rt)*4,4)}, v5, s[48:51], s{36+rt} offen offset:{(i%4)*1024} sc1", f"o{i}")
        def rdw(i):
            for ct in range(4):
                for hf in range(2):
                    a.ds(f"ds_read_b64_tr_b16 {vr(208+(i&1)*16+4*ct+2*hf,2)}, v{28+ct} offset:{i*4096+hf*512}", f"t{i}_{ct}")
        a("s_waitcnt lgkmcnt(0)")
        rdw(0)
        for i in range(9):
            if i + 1 < 9: rdw(i + 1)
            a.need_vm(f"o{i}")
            for ct in range(4):
                a.need_lds(f"t{i}_{ct}")
                for rt in range(nrt):
                    A = AC + (rt * 4 + ct) * 4
                    c = "0" if i == 0 else vr(A, 4)
                    a(f"v_mfma_f32_16x16x32_bf16 {vr(A,4)}, {vr(208+(i&1)*16+4*ct,4)}, {vr(OPB+(i*3+rt)*4,4)}, {c}")
        stamp(a, opt, 11)
        a(f"""v_and_b32 v2, 15, v1
v_mul_u32_u24 v2, {RS}, v2
v_and_b32 v3, 48, v1
v_add_u32 v2, v2, v3
s_mul_i32 s32, s44, {80*RS}
s_add_u32 s32, s32, {rh*48*RS}
v_add_u32 v2, s32, v2
s_barrier""")
        for rt in range(nrt):
            for ct in range(4):
                a(f"ds_write_b128 v2, {vr(AC+(rt*4+ct)*4,4)} offset:{rt*16*RS + ct*64}")
        if rh == 0: a("s_branch L_op_join")
    a.label("L_op_join")
    srd(a, 16, XB)
    a(f"""v_lshrrev_b32 v2, 3, v0
v_and_b32 v3, 7, v0
v_mul_u32_u24 v4, {RS}, v2
v_lshl_add_u32 v4, v3, 5, v4
v_add_u32 v6, {2*80*RS}, v4
v_mul_u32_u24 v7, 1152, v2
v_lshl_add_u32 v7, v3, 4, v7
s_mul_i32 s32, s40, {80*1152}
s_add_u32 s32, s32, s41
s_waitcnt lgkmcnt(0)
s_barrier""")
    for it in range(2):
        if it == 1: a("s_cmp_ge_u32 s20, 2\ns_cbranch_scc1 L_end")
        B = 32 + it * 32
        for w in range(4):
            for hh in range(2):
                a(f"ds_read_b128 {vr(B+w*8+hh*4,4)}, v{4 if w<2 else 6} offset:{(w&1)*80*RS + it*64*RS + hh*16}")
        a("s_waitcnt lgkmcnt(4)")
        for i in range(8): a(f"v_add_f32 v{B+i}, v{B+i}, v{B+8+i}")
        a("s_waitcnt lgkmcnt(0)")
        for i in range(8): a(f"v_add_f32 v{B+16+i}, v{B+16+i}, v{B+24+i}")
        for i in range(8): a(f"v_add_f32 v{B+i}, v{B+i}, v{B+16+i}")
        for i in range(4): a(f"v_cvt_pk_bf16_f32 v{B+i}, v{B+2*i}, v{B+2*i+1}")
        a(f"buffer_store_dwordx4 {vr(B,4)}, v7, s[16:19], s32 offen")
        if it == 0: a(f"s_add_u32 s32, s32, {64*1152}")

def kernel(opt):
    a = Asm()
    a("s_cmp_ge_u32 s2, 256\ns_cbranch_scc1 L_exit")
    stamp(a, opt, 0)
    a("""s_load_dwordx2 s[4:5], s[0:1], 0
s_load_dwordx2 s[8:9], s[0:1], 8
s_load_dwordx2 s[34:35], s[0:1], 32
s_load_dwordx2 s[16:17], s[0:1], 48
s_load_dwordx2 s[12:13], s[0:1], 72
s_load_dwordx2 s[52:53], s[0:1], 16
s_load_dwordx2 s[56:57], s[0:1], 40
s_load_dwordx2 s[60:61], s[0:1], 64
v_lshrrev_b32 v2, 6, v0
v_and_b32 v1, 63, v0
s_and_b32 s22, s2, 7
s_lshl_b32 s22, s22, 1
v_readfirstlane_b32 s20, v2
s_bfe_u32 s32, s2, 0x10003
s_add_u32 s22, s22, s32
s_lshr_b32 s21, s2, 4
s_mov_b32 s99, 0x40000
s_cmp_lt_u32 s20, 4
s_cbranch_scc1 L_compute""")
    loader(a, opt)
    a("s_branch L_attn")
    a.label("L_compute")
    computer(a, opt)
    a.label("L_attn")
    attn_setup(a)
    a("s_waitcnt lgkmcnt(0)\ns_barrier")
    a.lds = []
    stamp(a, opt, 3)
    def hook(kind, x):
        keep = list(a.lds)
        hook2(kind, x)
        a.lds = keep
    def hook2(kind, x):
        if kind == "item" and x == opt["flag_item"]:
            a(f"""s_cmp_ge_u32 s20, 4
s_cbranch_scc1 L_noflagk
s_lshl_b32 s32, s22, 4
s_add_u32 s32, s32, s21
s_lshl_b32 s32, s32, 7
s_lshl_b32 s34, s20, 2
s_add_u32 s32, s32, s34
s_add_u32 s32, s32, {FK_OFF}
v_mov_b32 v20, 0
v_mov_b32 v21, s23
s_waitcnt vmcnt(0)
s_mov_b64 exec, 1
s_cmp_lg_u32 s25, 0
s_cbranch_scc1 L_flagk_cross
buffer_store_dword v21, v20, s[12:15], s32 offen
s_branch L_flagk_done
L_flagk_cross:
buffer_store_dword v21, v20, s[12:15], s32 offen sc1
L_flagk_done:
s_mov_b64 exec, -1""")
            stamp(a, opt, 4)
            a.label("L_noflagk")
        if kind == "ldK" and x in (7, 5, 3, 1):
            lw = x in (7, 3)
            a(f"s_cmp_ge_u32 s20, 4\ns_cbranch_scc{0 if lw else 1} L_hs{x}")
            if x == 7:
                halo_fetch(a, opt)
                stamp(a, opt, 4)
                a("s_waitcnt vmcnt(10)")
            if x == 3: a("s_waitcnt vmcnt(0)")
            a("s_barrier")
            if x in (7, 5): stamp(a, opt, 5)
            else: stamp(a, opt, 6)
            a.label(f"L_hs{x}")
    attn_main(a, opt, hook)
    stamp(a, opt, 7)
    attn_finish(a, opt)
    outproj(a, opt)
    a.label("L_end")
    if opt.get("stamps"):
        a("s_waitcnt vmcnt(0)")
        stamp(a, opt, 12)
        stamp_flush(a, opt, 13)
        a("s_mov_b64 exec, 0x1ff\nv_lshlrev_b32 v2, 2, v1\ns_add_u32 s64, s64, 0x60000\nbuffer_store_dword v255, v2, s[12:15], s64 offen")
    a.label("L_exit")
    return a

DEFAULT = dict(rot="R", flag_item=3)

def build(opt):
    n = NAME + "_kernel"
    a = kernel(opt)
    body = a.text() + "    s_endpgm\n"
    for e in check_hazards(body): print(e, file=sys.stderr)
    return f"""; gated mix of two sliding-window attention blocks: one fused launch
; @launch grid=(256,1,1) block=(512,1,1) lds={LDS_BYTES}
.amdgcn_target "amdgcn-amd-amdhsa--gfx950"
.text
.globl {n}
.p2align 8
.type {n},@function
{n}:
{body}.section .rodata,"a"
.p2align 6
.amdhsa_kernel {n}
  .amdhsa_next_free_vgpr 256
  .amdhsa_next_free_sgpr 102
  .amdhsa_accum_offset 256
  .amdhsa_group_segment_fixed_size 0
  .amdhsa_kernarg_size 80
  .amdhsa_user_sgpr_count 2
  .amdhsa_user_sgpr_kernarg_segment_ptr 1
  .amdhsa_system_sgpr_workgroup_id_x 1
.end_amdhsa_kernel
"""

if __name__ == "__main__":
    opt = dict(DEFAULT)
    dst = f"cdna_kernels/{NAME}.s"
    for arg in sys.argv[1:]:
        k, v = arg.split("=")
        if k == "o": dst = v
        else: opt[k] = int(v) if v.lstrip("-").isdigit() else v
    open(dst, "w").write(build(opt))
    print("wrote", dst)
```
